```python
import torch

def _softmax(x, axis=-1):
    return torch.softmax(x, dim=axis)
def _gelu(x):
    return torch.nn.functional.gelu(x, approximate="tanh")
def _silu(x):
    return torch.nn.functional.silu(x)
def _sigmoid(x):
    return torch.sigmoid(x)
def _layernorm(x, axis=-1, eps=1e-5):
    m = x.mean(dim=axis, keepdim=True)
    v = x.var(dim=axis, keepdim=True, unbiased=False)
    return (x - m) / torch.sqrt(v + eps)
def _scatter_add(tgt, idx, src, axis=0):
    return tgt.clone().index_add_(axis, idx, src)
def _segment_sum(src, seg, n):
    out = torch.zeros((n,) + src.shape[1:], dtype=src.dtype)
    return out.index_add_(0, seg, src)
def _pad(x, pw):
    flat = tuple(v for pair in reversed(pw) for v in pair)
    return torch.nn.functional.pad(x, flat)

kernel_name = 'standalone__weight_only_int_quip__prompt'

def setup_inputs():

    _w = (lambda a: (lambda t: t.to(torch.bfloat16) if t.is_floating_point() else t)(torch.as_tensor(a)))
    B, S, D, F = 1, 2048, 640, 1728
    G = 64 if 64 > 0 else D
    D = (D // G) * G
    ng = D // G
    bits = 8 if 8 > 0 else 4
    qmax = 1 << bits
    qw = torch.randint(0, qmax, (D, F)).to(torch.int32)
    U, _ = (lambda *_a, **_k: torch.linalg.qr(*[torch.as_tensor(_x).float() for _x in _a], **_k))((lambda *s: torch.randn(*s, dtype=torch.bfloat16) * 0.05)(D, D))
    V, _ = (lambda *_a, **_k: torch.linalg.qr(*[torch.as_tensor(_x).float() for _x in _a], **_k))((lambda *s: torch.randn(*s, dtype=torch.bfloat16) * 0.05)(F, F))
    return {
        "x": _w((lambda *s: torch.randn(*s, dtype=torch.bfloat16) * 0.05)(B, S, D)),
        "qw": _w(qw),
        "scales": _w(torch.abs((lambda *s: torch.randn(*s, dtype=torch.bfloat16) * 0.05)(ng, F)) * 0.02 + 0.005),
        "zeros": _w(torch.full((ng, F), qmax / 2.0, dtype=float)),
        "U": _w(U.to(float)),
        "V": _w(V.to(float)),
    }

def reference(x, qw, scales, zeros, U, V):
    B, S, D = x.shape
    ng, F = scales.shape
    G = D // ng
    s = (lambda x, n, axis: torch.repeat_interleave(x, n, dim=axis))(scales, G, axis=0)
    z = (lambda x, n, axis: torch.repeat_interleave(x, n, dim=axis))(zeros, G, axis=0)
    wq = ((lambda x, dt: x.to(dt))(qw, x.dtype) - z) * s
    xr = torch.einsum("bsd,de->bse", x, U)
    h  = torch.einsum("bse,ef->bsf", xr, wq)
    y  = torch.einsum("bsf,fg->bsg", h, V)
    return y
```

```python
import sys, argparse, math

ap = argparse.ArgumentParser()
ap.add_argument("-o", default="k.s")
ap.add_argument("--stamps", action="store_true")
ap.add_argument("--depth", type=int, default=3)
ap.add_argument("--xm", type=int, default=4)
ap.add_argument("--outflag", default="")
ap.add_argument("--nostore", action="store_true")
ap.add_argument("--dbgwg", type=int, default=0)
ap.add_argument("--spin", type=int, default=400000)
ap.add_argument("--nvpre", type=int, default=14)
ap.add_argument("--vlead", type=int, default=4)
ap.add_argument("--dpre", type=int, default=2)
ap.add_argument("--dgap", type=int, default=1)
ap.add_argument("--stampset", default="main")
ap.add_argument("--cyc", action="store_true")
ap.add_argument("--wsoff", type=lambda x: int(x, 0), default=0)
ap.add_argument("--nv1", type=int, default=4)
ap.add_argument("--x1", type=int, default=7)
ap.add_argument("--plan", default="[({2:0},{}), ({3:27},{1:0}), ({1:54},{0:8,2:16,3:24}), ({0:81,2:108,3:135},{})]")
ap.add_argument("--ntq", default="nt")
ap.add_argument("--ntv", default="")
ap.add_argument("--ntx", default="")
ap.add_argument("--ntu", default="")
ap.add_argument("--noscout", action="store_true")
ap.add_argument("--sgap", type=int, default=900)
ap.add_argument("--norotc", action="store_true")
ap.add_argument("--norotd", action="store_true")
ap.add_argument("--nopf", action="store_true")
ap.add_argument("--pfearly", type=int, default=1)
args = ap.parse_args()

NAME = "standalone__weight_only_int_quip__prompt_kernel"
S_, D_, F_ = 2048, 640, 1728
WO = args.wsoff
WQF_OFF, WQF_SZ = WO, 2160 * 1024
WVF_OFF, WVF_SZ = WO + 0x240000, 109 * 20480
WVF_ALL = 112 * 20480
XRF_OFF, XRF_SZ = WO + 0x480000, 128 * 20480
FLG_OFF, FLG_SZ = WO + 0x700000, 0x10000
FL = 256
NONCE = 0x8000
STAMP_OFF = 0x8000000
HUGE = 0x7F000000

L = []
def e(s): L.append("  " + s)
def lab(s): L.append(s + ":")
def cm(s): L.append("  ; " + s)
def nop(n):
    while n > 0:
        k = min(n, 16); e(f"s_nop {k-1}"); n -= k
def vr(a, n=1): return f"v{a}" if n == 1 else f"v[{a}:{a+n-1}]"
def ar(a, n=1): return f"a{a}" if n == 1 else f"a[{a}:{a+n-1}]"
def sr(a, n=1): return f"s{a}" if n == 1 else f"s[{a}:{a+n-1}]"

sWG, sW, sE, sX, sJ, sR, sC = 2, 3, 4, 5, 6, 7, 8
P_X, P_QW, P_SC, P_ZR, P_U, P_V, P_OUT, P_DBG, P_WS = 16, 18, 20, 22, 24, 26, 28, 30, 32
R_A, R_B, R_Z, R_V, R_WQF, R_WVF, R_XRF, R_FLG, R_OUT = 36, 40, 44, 48, 52, 56, 60, 64, 68
T = [9, 10, 11, 12, 13, 14, 15, 34, 35, 72, 73, 74, 75, 76, 77, 78, 79]
ST0 = 80
def stamp(k, grp="main"):
    if not args.stamps: return
    if k != 0 and grp != args.stampset: return
    e(f"{'s_memtime' if args.cyc else 's_memrealtime'} {sr(ST0+2*k,2)}")

def srd(r, pbase, size, off=0):
    if off:
        e(f"s_add_u32 {sr(r)}, {sr(pbase)}, {off:#x}")
        e(f"s_addc_u32 {sr(r+1)}, {sr(pbase+1)}, 0")
        e(f"s_and_b32 {sr(r+1)}, {sr(r+1)}, 0xffff")
    else:
        e(f"s_mov_b32 {sr(r)}, {sr(pbase)}")
        e(f"s_and_b32 {sr(r+1)}, {sr(pbase+1)}, 0xffff")
    e(f"s_mov_b32 {sr(r+2)}, {size:#x}")
    e(f"s_mov_b32 {sr(r+3)}, 0x20000")

pollid = [0]
def poll(voff, vtmp):
    i = pollid[0]; pollid[0] += 1
    cnt = T[16]
    e(f"s_mov_b32 {sr(cnt)}, {args.spin}")
    lab(f"L_poll{i}")
    e(f"buffer_load_dword {vr(vtmp)}, {vr(voff)}, {sr(R_FLG,4)}, 0 offen sc1")
    e("s_waitcnt vmcnt(0)")
    e(f"v_cmp_ne_u32 vcc, {sr(sE)}, {vr(vtmp)}")
    e("s_cmp_eq_u64 vcc, 0")
    e(f"s_cbranch_scc1 L_pollok{i}")
    e("s_sleep 1")
    e(f"s_sub_u32 {sr(cnt)}, {sr(cnt)}, 1")
    e(f"s_cmp_lg_u32 {sr(cnt)}, 0")
    e(f"s_cbranch_scc1 L_poll{i}")
    lab(f"L_pollok{i}")

def flag_store(soff_reg, va, vb):
    e(f"v_mov_b32 {vr(va)}, {sr(soff_reg)}")
    e(f"v_mov_b32 {vr(vb)}, {sr(sE)}")
    e("s_mov_b64 exec, 1")
    e(f"buffer_store_dword {vr(vb)}, {vr(va)}, {sr(R_FLG,4)}, 0 offen sc1")
    e("s_mov_b64 exec, -1")

def mfma(d, a, b, c):
    e(f"v_mfma_f32_16x16x32_bf16 {d}, {a}, {b}, {c}")

L.append(f"; @launch grid=(256,1,1) block=(256,1,1) lds=163840")
L.append('.amdgcn_target "amdgcn-amd-amdhsa--gfx950"')
L.append(".text")
L.append(f".globl {NAME}")
L.append(".p2align 8")
L.append(f".type {NAME},@function")
lab(NAME)
e(f"s_cmp_ge_u32 {sr(sWG)}, 256")
e("s_cbranch_scc1 L_end")
stamp(0)
e(f"s_load_dwordx16 s[16:31], s[0:1], 0")
e(f"s_load_dwordx2 {sr(P_WS,2)}, s[0:1], 64")
e("s_mov_b32 s0, 0")
if args.stamps:
    for k in range(2, 22): e(f"s_mov_b32 {sr(ST0+k)}, 0")
vL, vQ, vI = 0, 1, 2
e("v_lshrrev_b32 v1, 6, v0")
e("v_and_b32 v0, 63, v0")
e(f"v_readfirstlane_b32 {sr(sW)}, v1")
e(f"v_lshrrev_b32 {vr(vQ)}, 4, v0")
e(f"v_and_b32 {vr(vI)}, 15, v0")
e(f"s_and_b32 {sr(sX)}, {sr(sWG)}, 7")
e(f"s_lshr_b32 {sr(sJ)}, {sr(sWG)}, 3")
e(f"s_cmp_ge_u32 {sr(sJ)}, 27")
e("s_cbranch_scc1 L_roleB")

cm("================= role C: dequant slice, V preload, WV tile =================")
e(f"s_mul_i32 {sr(T[0])}, {sr(sX)}, 27")
e(f"s_add_u32 {sr(T[0])}, {sr(T[0])}, {sr(sJ)}")
e(f"s_and_b32 {sr(sR)}, {sr(T[0])}, 7")
e(f"s_lshr_b32 {sr(sC)}, {sr(T[0])}, 3")
vQO, vSO, vL16, vL16b = 3, 4, 5, 6
vQO2, vQR = 7, 22
vDV = 8
vTA = 12
vPFX, vPFV, vPD = 20, 21, 23
sM0 = T[12]
e("v_lshrrev_b32 v16, 3, v0")
e("v_mul_u32_u24 v16, 6912, v16")
e("v_and_b32 v17, 7, v0")
e(f"v_xor_b32 v17, v17, {vr(vQ)}")
e(f"v_lshl_add_u32 {vr(vQO)}, v17, 4, v16")
e("v_xor_b32 v17, 4, v17")
e(f"v_lshl_add_u32 {vr(vQO2)}, v17, 4, v16")
e(f"v_add_u32 {vr(vQO2)}, {8*6912 - 1024}, {vr(vQO2)}")
e(f"v_lshlrev_b32 {vr(vSO)}, 4, {vr(vQ)}")
e(f"v_mul_u32_u24 {vr(vPFX)}, 1280, v0")
sq, ss, so = T[2:5], T[5:8], T[8:11]
th, trb = T[11], T[13]
e(f"s_lshl_b32 {sr(T[15])}, {sr(sC)}, 1")
e(f"s_mul_i32 {sr(T[14])}, {sr(sR)}, 5")
e(f"s_add_u32 {sr(T[14])}, {sr(T[14])}, {sr(sW)}")
for k in range(3):
    if k == 0:
        e(f"s_mov_b32 {sr(trb)}, {sr(T[14])}")
        e(f"s_mov_b32 {sr(th)}, {sr(T[15])}")
    elif k == 1:
        e(f"s_cmp_ge_u32 {sr(sW)}, 1")
        e(f"s_cselect_b32 {sr(trb)}, -1, 4")
        e(f"s_addc_u32 {sr(th)}, {sr(T[15])}, 0")
        e(f"s_add_u32 {sr(trb)}, {sr(trb)}, {sr(T[14])}")
    else:
        e(f"s_add_u32 {sr(trb)}, {sr(T[14])}, 3")
        e(f"s_add_u32 {sr(th)}, {sr(T[15])}, 1")
    e(f"s_mul_i32 {sr(sq[k])}, {sr(trb)}, 110592")
    e(f"s_lshl_b32 {sr(T[1])}, {sr(th)}, 7")
    e(f"s_add_u32 {sr(sq[k])}, {sr(sq[k])}, {sr(T[1])}")
    e(f"s_lshr_b32 {sr(T[0])}, {sr(trb)}, 2")
    e(f"s_mul_i32 {sr(ss[k])}, {sr(T[0])}, 3456")
    e(f"s_lshr_b32 {sr(T[1])}, {sr(T[1])}, 1")
    e(f"s_add_u32 {sr(ss[k])}, {sr(ss[k])}, {sr(T[1])}")
e(f"s_cmp_ge_u32 {sr(sW)}, 2")
e(f"s_cselect_b32 {sr(sq[2])}, {HUGE:#x}, {sr(sq[2])}")
e(f"s_cselect_b32 {sr(ss[2])}, {HUGE:#x}, {sr(ss[2])}")
e(f"s_mul_i32 {sr(sM0)}, {sr(sW)}, 40960")
pfid = [0]
PN, PK_, PS = 96, 97, 98
if args.stamps: PN, PK_, PS = T[8], T[9], T[10]
def pf_point(xu, vv, tmp=None):
    if args.nopf: return
    n, k, sub = tmp if tmp else (T[2], T[3], T[4])
    i = pfid[0]; pfid[0] += 1
    if xu:
        e(f"s_mov_b32 {sr(n)}, 255")
        for w_, c_ in xu.items():
            e(f"s_cmp_eq_u32 {sr(sW)}, {w_}")
            e(f"s_cselect_b32 {sr(n)}, {c_}, {sr(n)}")
        e(f"s_add_u32 {sr(n)}, {sr(n)}, {sr(sJ)}")
        e(f"s_cmp_ge_u32 {sr(n)}, 140")
        e(f"s_cbranch_scc1 L_pfd{i}")
        e(f"s_mul_i32 {sr(k)}, {sr(n)}, 4682")
        e(f"s_lshr_b32 {sr(k)}, {sr(k)}, 16")
        e(f"s_mul_i32 {sr(sub)}, {sr(k)}, 14")
        e(f"s_sub_u32 {sr(sub)}, {sr(n)}, {sr(sub)}")
        e(f"s_cmp_ge_u32 {sr(sub)}, 4")
        e(f"s_cbranch_scc1 L_pfu{i}")
        e(f"s_lshl_b32 {sr(n)}, {sr(sX)}, 2")
        e(f"s_add_u32 {sr(n)}, {sr(n)}, {sr(sub)}")
        e(f"s_mul_i32 {sr(n)}, {sr(n)}, {64*1280}")
        e(f"s_lshl_b32 {sr(k)}, {sr(k)}, 7")
        e(f"s_add_u32 {sr(n)}, {sr(n)}, {sr(k)}")
        e(f"buffer_load_dword {vr(vPD)}, {vr(vPFX)}, {sr(R_XRF,4)}, {sr(n)} offen {args.ntx}")
        e(f"s_branch L_pfd{i}")
        lab(f"L_pfu{i}")
        e(f"s_mul_i32 {sr(n)}, {sr(k)}, {64*1280}")
        e(f"s_lshl_b32 {sr(sub)}, {sr(sub)}, 7")
        e(f"s_add_u32 {sr(n)}, {sr(n)}, {sr(sub)}")
        e(f"s_sub_u32 {sr(n)}, {sr(n)}, 512")
        e(f"buffer_load_dword {vr(vPD)}, {vr(vPFX)}, {sr(R_OUT,4)}, {sr(n)} offen {args.ntu}")
        lab(f"L_pfd{i}")
    if vv:
        e(f"s_mov_b32 {sr(n)}, 255")
        for w_, c_ in vv.items():
            e(f"s_cmp_eq_u32 {sr(sW)}, {w_}")
            e(f"s_cselect_b32 {sr(n)}, {c_}, {sr(n)}")
        e(f"s_add_u32 {sr(n)}, {sr(n)}, {sr(sR)}")
        e(f"s_cmp_ge_u32 {sr(n)}, 27")
        e(f"s_cbranch_scc1 L_pfe{i}")
        e(f"s_mul_i32 {sr(n)}, {sr(n)}, {64*3456}")
        e(f"s_lshl_b32 {sr(k)}, {sr(sC)}, 7")
        e(f"s_add_u32 {sr(n)}, {sr(n)}, {sr(k)}")
        e(f"buffer_load_dword {vr(vPD)}, {vr(vPFV)}, {sr(R_V,4)}, {sr(n)} offen {args.ntv}")
        lab(f"L_pfe{i}")
PLAN = eval(args.plan)
stamp(1, "A")
e("s_waitcnt lgkmcnt(0)")
stamp(2, "A")
srd(R_XRF, P_X, S_ * D_ * 2)
srd(R_OUT, P_U, D_ * D_ * 2)
pf_point(*PLAN[0], tmp=(T[8], T[9], T[10]))
srd(R_A, P_QW, D_ * F_ * 4)
QD, SD, ZD = 32, 56, 68
for k in range(3):
    e(f"s_add_u32 m0, {sr(sM0)}, {32768 + 2048*k}")
    e("s_nop 0")
    e(f"buffer_load_dwordx4 {vr(vQO)}, {sr(R_A,4)}, {sr(sq[k])} offen {args.ntq} lds")
    e(f"buffer_load_dwordx4 {vr(vQO2)}, {sr(R_A,4)}, {sr(sq[k])} offen offset:1024 {args.ntq} lds")
srd(R_B, P_SC, 10 * F_ * 2)
srd(R_Z, P_ZR, 10 * F_ * 2)
for k in range(3):
    e(f"buffer_load_dwordx4 {vr(SD+4*k,4)}, {vr(vSO)}, {sr(R_B,4)}, {sr(ss[k])} offen")
    e(f"buffer_load_dwordx4 {vr(ZD+4*k,4)}, {vr(vSO)}, {sr(R_Z,4)}, {sr(ss[k])} offen")
srd(R_V, P_V, F_ * F_ * 2)
e(f"v_mul_u32_u24 {vr(vPFV)}, 3456, v0")
nP0b = 1 if (PLAN[1][0] or PLAN[1][1]) and not args.nopf else 0
if nP0b:
    busy = set(PLAN[1][0]) | set(PLAN[1][1])
    pf_point(*PLAN[1])
    idle = [w_ for w_ in range(4) if w_ not in busy]
e(f"s_add_u32 s10, {sr(P_WS)}, {FLG_OFF+NONCE:#x}")
e(f"s_addc_u32 s11, {sr(P_WS+1)}, 0")
e(f"s_load_dword {sr(sE)}, s[10:11], 0")
stamp(3, "A")
L.append("@SCOUT@")
stamp(4, "A")
srd(R_WQF, P_WS, WQF_SZ, WQF_OFF)
srd(R_FLG, P_WS, FLG_SZ, FLG_OFF)
e(f"v_lshlrev_b32 {vr(vL16)}, 4, {vr(vL)}")
e(f"v_add_u32 {vr(vL16b)}, 4096, {vr(vL16)}")
e(f"s_mul_i32 {sr(T[14])}, {sr(sR)}, 54")
e(f"s_add_u32 {sr(T[14])}, {sr(T[14])}, {sr(T[15])}")
e(f"s_mul_i32 {sr(T[14])}, {sr(T[14])}, 5120")
e(f"s_lshl_b32 {sr(T[0])}, {sr(sW)}, 10")
e(f"s_add_u32 {sr(so[0])}, {sr(T[14])}, {sr(T[0])}")
e(f"s_add_u32 {sr(so[1])}, {sr(so[0])}, 4096")
e(f"s_add_u32 {sr(so[2])}, {sr(so[0])}, 8192")
e(f"s_cmp_ge_u32 {sr(sW)}, 2")
e(f"s_cselect_b32 {sr(so[2])}, {HUGE:#x}, {sr(so[2])}")
e(f"v_lshrrev_b32 v16, 1, {vr(vI)}")
e(f"v_lshlrev_b32 v17, 1, {vr(vQ)}")
e("v_xor_b32 v16, v16, v17")
e(f"v_lshlrev_b32 v17, 7, {vr(vI)}")
e(f"v_add_u32 v17, {sr(sM0)}, v17")
e(f"v_lshl_add_u32 {vr(vQR)}, v16, 4, v17")
e("v_xor_b32 v16, 1, v16")
e(f"v_lshl_add_u32 v24, v16, 4, v17")
e("v_lshrrev_b32 v16, 3, v0")
e("v_mul_u32_u24 v16, 3456, v16")
e("v_and_b32 v17, 7, v0")
e(f"v_and_b32 v18, 1, {vr(vQ)}")
e("v_lshlrev_b32 v18, 1, v18")
e("v_xor_b32 v17, v17, v18")
e("v_xor_b32 v18, 4, v17")
for t in range(4):
    e(f"v_lshl_add_u32 {vr(vDV+t)}, {vr(17 + (t&1))}, 4, v16")
    if t: e(f"v_add_u32 {vr(vDV+t)}, {t*(27648-1024)}, {vr(vDV+t)}")
sVB, sVM, sRot = T[11], T[13], T[7]
e(f"s_mul_i32 {sr(sVB)}, {sr(sW)}, 110592")
e(f"s_lshl_b32 {sr(T[1])}, {sr(sC)}, 7")
e(f"s_add_u32 {sr(sVB)}, {sr(sVB)}, {sr(T[1])}")
e("v_bfe_u32 v16, v0, 2, 2")
e("v_and_b32 v17, 3, v0")
e(f"v_lshlrev_b32 v19, 10, {vr(vQ)}")
e("v_lshl_add_u32 v19, v16, 7, v19")
e("v_lshl_add_u32 v19, v17, 3, v19")
e(f"v_add_u32 v19, {sr(sM0)}, v19")
e("v_lshrrev_b32 v16, 1, v16")
e(f"v_and_b32 v17, 1, {vr(vQ)}")
e("v_lshl_or_b32 v16, v17, 1, v16")
e(f"v_xor_b32 v16, {sr(sW)}, v16")
for cb in range(4):
    e(f"v_xor_b32 v17, {cb}, v16")
    e(f"v_lshl_add_u32 {vr(vTA+cb)}, v17, 5, v19")
e(f"s_mov_b32 {sr(sRot)}, 0")
e(f"s_mov_b32 {sr(sVM)}, {sr(sRot)}")
SU, ZU = 80, 104
OD = 128
stamp(5, "A")
if nP0b:
    cond = sorted(busy)
    e(f"s_mov_b32 {sr(T[0])}, {sum(1 << w_ for w_ in cond)}")
    e(f"s_bitcmp1_b32 {sr(T[0])}, {sr(sW)}")
    e("s_cbranch_scc1 L_w1")
    e("s_waitcnt vmcnt(0)")
    lab("L_w1")
    e("s_waitcnt vmcnt(1)")
else:
    e("s_waitcnt vmcnt(0)")
stamp(1)
stamp(6, "A")
for k in range(3):
    e(f"ds_read_b128 {vr(QD+8*k,4)}, {vr(vQR)} offset:{32768 + 2048*k}")
    e(f"ds_read_b128 {vr(QD+8*k+4,4)}, v24 offset:{32768 + 2048*k}")
for k in range(3):
    for j in range(4):
        e(f"v_lshlrev_b32 {vr(ZU+8*k+2*j)}, 16, {vr(ZD+4*k+j)}")
        e(f"v_and_b32 {vr(ZU+8*k+2*j+1)}, 0xffff0000, {vr(ZD+4*k+j)}")
    if k == 0: e("s_waitcnt lgkmcnt(0)")
    for j in range(8):
        e(f"v_cvt_f32_i32 {vr(QD+8*k+j)}, {vr(QD+8*k+j)}")
    for j in range(4):
        e(f"v_pk_add_f32 {vr(QD+8*k+2*j,2)}, {vr(QD+8*k+2*j,2)}, {vr(ZU+8*k+2*j,2)} neg_lo:[0,1] neg_hi:[0,1]")
    for j in range(4):
        e(f"v_cvt_pk_bf16_f32 {vr(OD+4*k+j)}, {vr(QD+8*k+2*j)}, {vr(QD+8*k+2*j+1)}")
    for j in range(4):
        e(f"v_lshlrev_b32 {vr(SU+8*k+2*j)}, 16, {vr(SD+4*k+j)}")
        e(f"v_and_b32 {vr(SU+8*k+2*j+1)}, 0xffff0000, {vr(SD+4*k+j)}")
    for j in range(4):
        e(f"v_lshlrev_b32 {vr(QD+8*k+2*j)}, 16, {vr(OD+4*k+j)}")
        e(f"v_and_b32 {vr(QD+8*k+2*j+1)}, 0xffff0000, {vr(OD+4*k+j)}")
    for j in range(4):
        e(f"v_pk_mul_f32 {vr(QD+8*k+2*j,2)}, {vr(QD+8*k+2*j,2)}, {vr(SU+8*k+2*j,2)}")
    for j in range(4):
        e(f"v_cvt_pk_bf16_f32 {vr(OD+4*k+j)}, {vr(QD+8*k+2*j)}, {vr(QD+8*k+2*j+1)}")
    e(f"buffer_store_dwordx4 {vr(OD+4*k,4)}, {vr(vL16)}, {sr(R_WQF,4)}, {sr(so[k])} offen sc1")
stamp(7, "A")
def vdma(m):
    slot = m % 10
    e(f"s_mul_i32 {sr(T[0])}, {sr(sVM)}, 442368")
    e(f"s_add_u32 m0, {sr(sM0)}, {slot*4096}")
    e(f"s_add_u32 {sr(T[0])}, {sr(T[0])}, {sr(sVB)}")
    for t in range(4):
        e(f"buffer_load_dwordx4 {vr(vDV+t)}, {sr(R_V,4)}, {sr(T[0])} offen offset:{t*1024} {args.ntv} lds")
    e(f"s_add_u32 {sr(sVM)}, {sr(sVM)}, 1")
NVP = args.nvpre
NV1 = min(args.nv1, NVP)
n1 = min(NVP, 10)
for m in range(NV1): vdma(m)
e(f"s_add_u32 {sr(sE)}, {sr(sE)}, 1")
e(f"s_or_b32 {sr(sE)}, {sr(sE)}, 0x80000000")
e(f"s_mul_i32 {sr(T[1])}, {sr(sR)}, {FL}")
e(f"s_lshl_b32 {sr(T[0])}, {sr(sC)}, 2")
e(f"s_add_u32 {sr(T[1])}, {sr(T[1])}, {sr(T[0])}")
e(f"s_waitcnt vmcnt({4*NV1})")
stamp(8, "A")
e("s_barrier")
stamp(2)
stamp(9, "A")
e(f"s_cmp_lg_u32 {sr(sW)}, 0")
e("s_cbranch_scc1 L_noflagA")
flag_store(T[1], 16, 17)
lab("L_noflagA")
pf_point(*PLAN[2])
def trread(m):
    slot = m % 10
    for cb in range(4):
        for a in range(2):
            e(f"ds_read_b64_tr_b16 {ar(16*m+4*cb+2*a,2)}, {vr(vTA+cb)} offset:{slot*4096+a*512}")
vo = [m for m in range(NV1) for _ in range(4)]
def vwait(m): e(f"s_waitcnt vmcnt({len(vo) - 1 - max(i for i, x in enumerate(vo) if x == m)})")
nread = 0
for m in range(NV1, NVP):
    if m >= 10:
        while nread <= m - 10 + 1 and nread < NVP:
            vwait(nread); trread(nread); nread += 1
        e("s_waitcnt lgkmcnt(8)")
    vdma(m); vo += [m] * 4
    if m == args.x1: pf_point(*PLAN[3])
while nread < NVP:
    vwait(nread); trread(nread); nread += 1
stamp(3)
stamp(10, "A")
e(f"s_cmp_lg_u32 {sr(sW)}, 0")
e("s_cbranch_scc1 L_nopollA")
e("v_min_u32 v16, 26, v0")
e("v_lshlrev_b32 v16, 2, v16")
e(f"s_mul_i32 {sr(T[1])}, {sr(sR)}, {FL}")
e(f"v_add_u32 v16, {sr(T[1])}, v16")
poll(16, 17)
lab("L_nopollA")
if args.x1 >= NVP or args.x1 < NV1: pf_point(*PLAN[3])
DEP = args.depth
ACC = 16
AB = 96
assert AB + DEP * 20 <= 256
sAB_, sAM, sAD = T[2], T[3], T[4]
e(f"s_mul_i32 {sr(sAB_)}, {sr(sR)}, 54")
e(f"s_add_u32 {sr(sAB_)}, {sr(sAB_)}, {sr(sW)}")
e(f"s_mul_i32 {sr(sAB_)}, {sr(sAB_)}, 5120")
e(f"s_cmp_ge_u32 {sr(sW)}, 2")
e(f"s_cselect_b32 {sr(sAD)}, 13, 99")
e(f"s_mov_b32 {sr(sAM)}, {sr(sRot)}")
e("s_waitcnt lgkmcnt(0)")
e("s_barrier")
stamp(4)
stamp(1, "C")
def aload_parts(m):
    b = AB + (m % DEP) * 20
    pre = [f"s_mul_i32 {sr(T[5])}, {sr(sAM)}, 20480", f"s_add_u32 {sr(T[5])}, {sr(T[5])}, {sr(sAB_)}",
           f"s_cmp_eq_u32 {sr(sAM)}, {sr(sAD)}", f"s_cselect_b32 {sr(T[5])}, {HUGE:#x}, {sr(T[5])}"]
    g = []
    for i in range(4):
        g.append([f"buffer_load_dwordx4 {vr(b+4*i,4)}, {vr(vL16)}, {sr(R_WQF,4)}, {sr(T[5])} offen offset:{i*1024} sc1"])
    g.append([f"buffer_load_dwordx4 {vr(b+16,4)}, {vr(vL16b)}, {sr(R_WQF,4)}, {sr(T[5])} offen sc1"])
    post = []
    if m < 13:
        post = [f"s_add_u32 {sr(sAM)}, {sr(sAM)}, 1"]
    return pre, g, post
def vdma_parts(m):
    slot = m % 10
    pre = [f"s_mul_i32 {sr(T[0])}, {sr(sVM)}, 442368", f"s_add_u32 m0, {sr(sM0)}, {slot*4096}", f"s_add_u32 {sr(T[0])}, {sr(T[0])}, {sr(sVB)}",
           f"s_add_u32 {sr(sVM)}, {sr(sVM)}, 1"]
    g = [[f"buffer_load_dwordx4 {vr(vDV+t)}, {sr(R_V,4)}, {sr(T[0])} offen offset:{t*1024} {args.ntv} lds"] for t in range(4)]
    return pre, g
order = []
def younger_than(key):
    return len(order) - 1 - max(i for i, x in enumerate(order) if x == key)
VLEAD = args.vlead
for m in range(DEP):
    if NVP <= m < min(14, VLEAD):
        vdma(m); order.extend([("V", m)] * 4)
    pre, g, post = aload_parts(m)
    for x in pre: e(x)
    for i in range(5):
        e(g[i][0]); order.append(("A", m, i))
    for x in post: e(x)
for m in range(max(NVP, DEP), min(14, VLEAD)):
    vdma(m); order.extend([("V", m)] * 4)
for m in range(14):
    b = AB + (m % DEP) * 20
    if m in (0, 1, 2, 4, 6, 8, 10, 12): stamp({0: 2, 1: 3, 2: 4, 4: 5, 6: 6, 8: 7, 10: 8, 12: 9}[m], "C")
    if m + 1 < 14 and m + 1 >= NVP:
        e(f"s_waitcnt vmcnt({younger_than(('V', m+1))})")
        trq = []
        for cb in range(4):
            for a in range(2):
                trq.append(f"ds_read_b64_tr_b16 {ar(16*(m+1)+4*cb+2*a,2)}, {vr(vTA+cb)} offset:{((m+1)%10)*4096+a*512}")
    else:
        trq = []
    if m >= NVP: e("s_waitcnt lgkmcnt(0)")
    fill = []
    if m + DEP < 14:
        pre, g, post = aload_parts(m + DEP)
        for i, x in enumerate(pre): fill.append((i, [x], None))
        for i in range(5): fill.append((4*i + 3, g[i], ("A", m + DEP, i)))
        apost = post
    else:
        apost = []
    mv = m + VLEAD
    if NVP <= mv < 14 and mv >= VLEAD:
        pre, g = vdma_parts(mv)
        fill.append((4, pre, None))
        for t in range(4): fill.append((5 + 4*t, g[t], ("V", mv)))
    for i, x in enumerate(trq): fill.append((2*i + 1, [x], None))
    for i in range(5):
        e(f"s_waitcnt vmcnt({younger_than(('A', m, i))})")
        for cb in range(4):
            d = vr(ACC + (i*4+cb)*4, 4)
            mfma(d, vr(b+4*i, 4), ar(16*m+4*cb, 4), d if m else "0")
            for (sl, ins, key) in fill:
                if sl == i*4 + cb:
                    for x in ins: e(x)
                    if key: order.append(key)
    for x in apost: e(x)
stamp(5)
stamp(10, "C")
for j in range(1, 4):
    e(f"s_xor_b32 {sr(T[1])}, {sr(sW)}, {j}")
    e(f"s_mul_i32 {sr(T[1])}, {sr(T[1])}, 15360")
    e(f"v_add_u32 {vr(7+j)}, {sr(T[1])}, {vr(vL16)}")
e(f"s_mul_i32 {sr(T[1])}, {sr(sW)}, 15360")
e(f"v_add_u32 v7, {sr(T[1])}, {vr(vL16)}")
if NVP < 14: e("s_barrier")
nop(2)
for j in range(1, 4):
    for i in range(5):
        e(f"ds_write_b128 {vr(7+j)}, {vr(ACC+(i*4+j)*4,4)} offset:{(j-1)*5120 + i*1024}")
srd(R_WVF, P_WS, WVF_ALL, WVF_OFF)
gb, nj, tb = T[4], T[5], T[6]
e(f"s_lshl_b32 {sr(gb)}, {sr(sC)}, 2")
e(f"s_add_u32 {sr(gb)}, {sr(gb)}, {sr(sW)}")
e(f"s_mul_i32 {sr(nj)}, {sr(gb)}, 9363")
e(f"s_lshr_b32 {sr(nj)}, {sr(nj)}, 16")
e(f"s_mul_i32 {sr(T[1])}, {sr(nj)}, 7")
e(f"s_sub_u32 {sr(tb)}, {sr(gb)}, {sr(T[1])}")
e(f"s_and_b32 {sr(T[0])}, {sr(tb)}, 6")
e(f"s_add_u32 {sr(T[1])}, {sr(T[1])}, {sr(T[0])}")
e(f"s_mul_i32 {sr(T[1])}, {sr(T[1])}, 20480")
e(f"s_and_b32 {sr(T[0])}, {sr(tb)}, 1")
e(f"s_lshl_b32 {sr(T[0])}, {sr(T[0])}, 7")
e(f"s_add_u32 {sr(T[1])}, {sr(T[1])}, {sr(T[0])}")
e(f"s_mul_i32 {sr(T[0])}, {sr(sR)}, 2560")
e(f"s_add_u32 {sr(T[7])}, {sr(T[1])}, {sr(T[0])}")
e(f"v_bfe_u32 v12, {vr(vI)}, 2, 1")
e("v_mul_u32_u24 v12, 20480, v12")
e(f"v_lshrrev_b32 v13, 3, {vr(vI)}")
e("v_lshl_add_u32 v12, v13, 6, v12")
e(f"v_and_b32 v13, 3, {vr(vI)}")
e("v_lshl_add_u32 v12, v13, 4, v12")
e(f"v_lshlrev_b32 v13, 4, {vr(vI)}")
e(f"s_cmp_eq_u32 {sr(tb)}, 6")
e("s_cselect_b64 vcc, -1, 0")
e("v_cndmask_b32 v12, v12, v13, vcc")
e(f"v_and_b32 v13, 1, {vr(vQ)}")
e(f"v_lshrrev_b32 v14, 1, {vr(vQ)}")
e("v_lshl_add_u32 v12, v14, 8, v12")
e("v_lshl_add_u32 v15, v13, 3, v12")
e("v_lshl_add_u32 v12, v13, 9, v12")
e("s_waitcnt lgkmcnt(0)")
e("s_barrier")
for d in range(3):
    for i in range(5):
        e(f"ds_read_b128 {vr(116+d*20+4*i,4)}, v7 offset:{d*5120 + i*1024}")
for d in range(3):
    for i in range(5):
        e(f"s_waitcnt lgkmcnt({14 - d*5 - i})")
        for h in range(2):
            a_ = ACC + i*16 + 2*h
            e(f"v_pk_add_f32 {vr(a_,2)}, {vr(a_,2)}, {vr(116+d*20+4*i+2*h,2)}")
for i in range(5):
    a_ = ACC + i*16
    e(f"v_cvt_pk_bf16_f32 {vr(176+2*i)}, {vr(a_)}, {vr(a_+1)}")
    e(f"v_cvt_pk_bf16_f32 {vr(176+2*i+1)}, {vr(a_+2)}, {vr(a_+3)}")
e(f"buffer_store_dwordx2 {vr(184,2)}, v15, {sr(R_WVF,4)}, {sr(T[7])} offen offset:2048 sc1")
nop(1)
for p in range(2):
    e(f"v_permlane16_swap_b32 {vr(176+4*p)}, {vr(176+4*p+2)}")
    e(f"v_permlane16_swap_b32 {vr(176+4*p+1)}, {vr(176+4*p+3)}")
    e(f"buffer_store_dwordx4 {vr(176+4*p,4)}, v12, {sr(R_WVF,4)}, {sr(T[7])} offen offset:{p*1024} sc1")
sFO = T[15]
e(f"s_add_u32 {sr(sFO)}, {sr(sC)}, 8")
e(f"s_mul_i32 {sr(sFO)}, {sr(sFO)}, {FL}")
e(f"s_lshl_b32 {sr(T[0])}, {sr(sR)}, 2")
e(f"s_add_u32 {sr(sFO)}, {sr(sFO)}, {sr(T[0])}")
e("s_branch L_phaseD")

lab("L_roleB")
cm("================= role B: xr^T tile (128 e x 256 s) =================")
sP, sT = sR, sC
e(f"s_mov_b32 {sr(sP)}, {sr(sX)}")
e(f"s_sub_u32 {sr(sT)}, {sr(sJ)}, 27")
vDU, vDX, vAA, vBA = 4, 8, 12, 16
e(f"v_mul_u32_u24 v20, 1280, {vr(vQ)}")
for t in range(4):
    e(f"v_lshlrev_b32 v21, 1, {vr(vQ)}")
    if t >= 2: e("v_or_b32 v21, 8, v21")
    e(f"v_xor_b32 v21, v21, {vr(vI)}")
    e(f"v_lshl_add_u32 {vr(vDU+t)}, v21, 4, v20")
    if t: e(f"v_add_u32 {vr(vDU+t)}, {t*(5120-1024)}, {vr(vDU+t)}")
e("v_lshrrev_b32 v20, 3, v0")
e("v_mul_u32_u24 v20, 1280, v20")
e("v_and_b32 v21, 7, v0")
e(f"v_xor_b32 v21, v21, {vr(vQ)}")
e("v_xor_b32 v22, 4, v21")
for t in range(4):
    e(f"v_lshl_add_u32 {vr(vDX+t)}, {vr(21+(t&1))}, 4, v20")
    if t: e(f"v_add_u32 {vr(vDX+t)}, {t*(10240-1024)}, {vr(vDX+t)}")
sUO, sXO, sXO2, sMU, sMX, sK, sDl, sSl, sRs = T[2], T[3], T[4], T[5], T[6], T[7], T[8], T[9], T[10]
e(f"s_mul_i32 {sr(sUO)}, {sr(sW)}, {16*1280}")
e(f"s_lshl_b32 {sr(T[1])}, {sr(sT)}, 8")
e(f"s_add_u32 {sr(sUO)}, {sr(sUO)}, {sr(T[1])}")
e(f"s_lshl_b32 {sr(sXO)}, {sr(sP)}, 2")
e(f"s_add_u32 {sr(sXO)}, {sr(sXO)}, {sr(sW)}")
e(f"s_mul_i32 {sr(sXO)}, {sr(sXO)}, {64*1280}")
e(f"s_lshl_b32 {sr(sMU)}, {sr(sW)}, 12")
e(f"s_lshl_b32 {sr(sMX)}, {sr(sW)}, 13")
e(f"s_add_u32 {sr(sMX)}, {sr(sMX)}, 16384")
e("s_waitcnt lgkmcnt(0)")
srd(R_A, P_X, S_ * D_ * 2)
srd(R_B, P_U, D_ * D_ * 2)
def bdma(part, slot_imm=None):
    out = []
    def m0(base, add):
        if slot_imm is not None:
            return [f"s_add_u32 m0, {sr(base)}, {slot_imm + add}"]
        r = [f"s_add_u32 m0, {sr(base)}, {sr(sSl)}"]
        if add: r.append(f"s_add_u32 m0, m0, {add}")
        return r
    if part == 0:
        g = m0(sMU, 0) + [f"s_add_u32 {sr(sXO2)}, {sr(sXO)}, {32*1280}"]
        for t in range(4):
            g.append(f"buffer_load_dwordx4 {vr(vDU+t)}, {sr(R_B,4)}, {sr(sUO)} offen offset:{t*1024} {args.ntu} lds"); out.append(g); g = []
        g = m0(sMX, 0) + [f"s_add_u32 {sr(sUO)}, {sr(sUO)}, {64*1280}"]
        for t in range(2):
            g.append(f"buffer_load_dwordx4 {vr(vDX+t)}, {sr(R_A,4)}, {sr(sXO)} offen offset:{t*1024} {args.ntx} lds"); out.append(g); g = []
    else:
        g = []
        for t in range(2, 4):
            g.append(f"buffer_load_dwordx4 {vr(vDX+t)}, {sr(R_A,4)}, {sr(sXO)} offen offset:{t*1024} {args.ntx} lds"); out.append(g); g = []
        g = m0(sMX, 4096) + [f"s_add_u32 {sr(sXO)}, {sr(sXO)}, 128"]
        for t in range(4):
            g.append(f"buffer_load_dwordx4 {vr(vDX+t)}, {sr(R_A,4)}, {sr(sXO2)} offen offset:{t*1024} {args.ntx} lds"); out.append(g); g = []
    return out
for st in range(2):
    for part in range(2):
        for g in bdma(part, st * 49152):
            for x in g: e(x)
e(f"s_add_u32 s10, {sr(P_WS)}, {FLG_OFF+NONCE:#x}")
L.pop()
e(f"s_add_u32 s72, {sr(P_WS)}, {FLG_OFF+NONCE:#x}")
L.pop()
e(f"s_add_u32 s76, {sr(P_WS)}, {FLG_OFF+NONCE:#x}")
e(f"s_addc_u32 s77, {sr(P_WS+1)}, 0")
e(f"s_load_dword {sr(sE)}, s[76:77], 0")
srd(R_FLG, P_WS, FLG_SZ, FLG_OFF)
e("v_bfe_u32 v20, v0, 2, 2")
e("v_and_b32 v21, 3, v0")
e(f"v_lshlrev_b32 v22, 11, {vr(vQ)}")
e("v_lshl_add_u32 v22, v20, 8, v22")
e("v_lshl_add_u32 v22, v21, 3, v22")
e(f"v_and_b32 v21, 1, {vr(vQ)}")
e("v_lshl_or_b32 v20, v21, 2, v20")
e(f"s_and_b32 {sr(T[1])}, {sr(sW)}, 1")
e(f"s_lshl_b32 {sr(T[1])}, {sr(T[1])}, 2")
e(f"v_xor_b32 v20, {sr(T[1])}, v20")
for eb in range(4):
    e(f"v_xor_b32 v21, {eb}, v20")
    e(f"v_lshl_add_u32 {vr(vAA+eb)}, v21, 5, v22")
e(f"s_lshr_b32 {sr(T[1])}, {sr(sW)}, 1")
e(f"s_lshl_b32 {sr(T[1])}, {sr(T[1])}, 14")
e(f"s_add_u32 {sr(T[1])}, {sr(T[1])}, 16384")
e(f"v_lshlrev_b32 v22, 7, {vr(vI)}")
e(f"v_add_u32 v22, {sr(T[1])}, v22")
e(f"v_lshrrev_b32 v20, 1, {vr(vI)}")
e(f"v_xor_b32 v20, v20, {vr(vQ)}")
e(f"v_lshl_add_u32 {vr(vBA)}, v20, 4, v22")
e("v_xor_b32 v20, 4, v20")
e(f"v_lshl_add_u32 {vr(vBA+1)}, v20, 4, v22")
BACC = 128
for i in range(64): e(f"v_mov_b64 {vr(BACC+2*i,2)}, 0")
e("s_waitcnt lgkmcnt(0)")
e(f"s_add_u32 {sr(sE)}, {sr(sE)}, 1")
e(f"s_or_b32 {sr(sE)}, {sr(sE)}, 0x80000000")
def breads(kk, buf):
    b = buf * 48
    out = []
    for eb in range(4):
        for a in range(2):
            out.append(f"ds_read_b64_tr_b16 {ar(b+4*eb+2*a,2)}, {vr(vAA+eb)} offset:{kk*8192+a*1024}")
    for sb in range(8):
        out.append(f"ds_read_b128 {ar(b+16+4*sb,4)}, {vr(vBA+kk)} offset:{sb*2048}")
    return out
def bmfmas(buf):
    b = buf * 48
    out = []
    for sb in range(8):
        for eb in range(4):
            d = vr(BACC + (sb*4+eb)*4, 4)
            out.append(f"v_mfma_f32_16x16x32_bf16 {d}, {ar(b+4*eb,4)}, {ar(b+16+4*sb,4)}, {d}")
    return out
e("s_waitcnt vmcnt(12)")
e("s_barrier")
stamp(1)
for x in breads(0, 0): e(x)
e(f"s_mov_b32 {sr(sK)}, 0")
e(f"s_mov_b32 {sr(sSl)}, {2*49152}")
e(f"s_mov_b32 {sr(sRs)}, 0")
e("s_waitcnt lgkmcnt(0)")
L.append(".p2align 6")
lab("L_bloop")
mm = bmfmas(0); rd = breads(1, 1); dm = bdma(0)
mid = [f"s_mov_b32 {sr(sDl)}, 49152", f"s_cmp_eq_u32 {sr(sRs)}, {2*49152}",
       f"s_cselect_b32 {sr(sDl)}, {(-2*49152) & 0xffffffff:#x}, {sr(sDl)}"]
mid += [f"v_add_u32 {vr(vAA+i)}, {sr(sDl)}, {vr(vAA+i)}" for i in range(4)]
mid += [f"v_add_u32 {vr(vBA+i)}, {sr(sDl)}, {vr(vBA+i)}" for i in range(2)]
def place(mm, rd, dm, extra):
    dpos = {2 + 5*i: g for i, g in enumerate(dm)}
    rq = list(rd); xq = list(extra)
    for i, x in enumerate(mm):
        e(x)
        if i in dpos:
            for y in dpos[i]: e(y)
        elif rq: e(rq.pop(0))
        elif xq: e(xq.pop(0))
    assert not rq
    for y in xq: e(y)
place(mm, rd, dm, ["\n  ".join(mid[:3])] + mid[3:])
e("s_waitcnt vmcnt(6) lgkmcnt(0)")
e("s_barrier")
mm = bmfmas(1); rd = breads(0, 0); dm = bdma(1)
tail = [f"s_mov_b32 {sr(sSl)}, {sr(sRs)}", f"s_add_u32 {sr(sRs)}, {sr(sRs)}, {sr(sDl)}", f"s_add_u32 {sr(sK)}, {sr(sK)}, 1",
        "\n  ".join([f"s_cmp_ge_u32 {sr(sK)}, 8", f"s_cselect_b32 {sr(sUO)}, {HUGE:#x}, {sr(sUO)}", f"s_cselect_b32 {sr(sXO)}, {HUGE:#x}, {sr(sXO)}"])]
place(mm, rd, dm, [])
for y in tail: e(y)
e(f"s_cmp_lt_u32 {sr(sK)}, 10")
e("s_waitcnt lgkmcnt(0)")
e("s_cbranch_scc1 L_bloop")
stamp(5)
srd(R_XRF, P_WS, XRF_SZ, XRF_OFF)
e(f"s_lshl_b32 {sr(T[1])}, {sr(sP)}, 1")
e(f"s_lshr_b32 {sr(T[0])}, {sr(sW)}, 1")
e(f"s_add_u32 {sr(T[1])}, {sr(T[1])}, {sr(T[0])}")
e(f"s_mul_i32 {sr(T[1])}, {sr(T[1])}, {8*20480}")
e(f"s_lshl_b32 {sr(T[0])}, {sr(sT)}, 12")
e(f"s_add_u32 {sr(T[1])}, {sr(T[1])}, {sr(T[0])}")
e(f"s_and_b32 {sr(T[0])}, {sr(sW)}, 1")
e(f"s_lshl_b32 {sr(T[0])}, {sr(T[0])}, 11")
e(f"s_add_u32 {sr(T[1])}, {sr(T[1])}, {sr(T[0])}")
e(f"v_and_b32 v13, 1, {vr(vQ)}")
e(f"v_lshrrev_b32 v14, 1, {vr(vQ)}")
e(f"v_lshlrev_b32 v12, 4, {vr(vI)}")
e("v_lshl_add_u32 v12, v14, 8, v12")
e("v_lshl_add_u32 v12, v13, 9, v12")
def bcvt(sb, p):
    o = 32 + (sb*2+p)*4
    for h in range(2):
        a_ = BACC + (sb*4+2*p+h)*4
        e(f"v_cvt_pk_bf16_f32 {vr(o+2*h)}, {vr(a_)}, {vr(a_+1)}")
        e(f"v_cvt_pk_bf16_f32 {vr(o+2*h+1)}, {vr(a_+2)}, {vr(a_+3)}")
bcvt(0, 0)
for n in range(16):
    sb, p = n >> 1, n & 1
    if n + 1 < 16: bcvt((n+1) >> 1, (n+1) & 1)
    else: nop(2)
    o = 32 + n*4
    e(f"v_permlane16_swap_b32 {vr(o)}, {vr(o+2)}")
    e(f"v_permlane16_swap_b32 {vr(o+1)}, {vr(o+3)}")
    e(f"buffer_store_dwordx4 {vr(o,4)}, v12, {sr(R_XRF,4)}, {sr(T[1])} offen offset:{p*1024} sc1")
    if p == 1 and sb < 7: e(f"s_add_u32 {sr(T[1])}, {sr(T[1])}, 20480")
e(f"s_add_u32 {sr(sFO)}, {sr(sP)}, 40")
e(f"s_mul_i32 {sr(sFO)}, {sr(sFO)}, {FL}")
e(f"s_lshl_b32 {sr(T[0])}, {sr(sT)}, 2")
e(f"s_add_u32 {sr(sFO)}, {sr(sFO)}, {sr(T[0])}")

lab("L_phaseD")
cm("================= phase D: y tile (128 s x 112 g) =================")
cm("set-up first (overlaps the drain of this workgroup's hand-off stores), then publish the flag")
XM = args.xm; XN = 32 // XM
sMI, sNJ = sR, sC
lxn = int(math.log2(XN)); gx = 16 // XN
e(f"s_lshr_b32 {sr(T[0])}, {sr(sX)}, {int(math.log2(gx))}")
e(f"s_and_b32 {sr(T[1])}, {sr(sX)}, {gx-1}")
e(f"s_mul_i32 {sr(sMI)}, {sr(T[0])}, {XM}")
e(f"s_lshr_b32 {sr(T[0])}, {sr(sJ)}, {lxn}")
e(f"s_add_u32 {sr(sMI)}, {sr(sMI)}, {sr(T[0])}")
e(f"s_mul_i32 {sr(sNJ)}, {sr(T[1])}, {XN}")
e(f"s_and_b32 {sr(T[0])}, {sr(sJ)}, {XN-1}")
e(f"s_add_u32 {sr(sNJ)}, {sr(sNJ)}, {sr(T[0])}")
srd(R_XRF, P_WS, XRF_SZ, XRF_OFF)
srd(R_A, P_WS, WVF_SZ, WVF_OFF)
srd(R_OUT, P_OUT, S_ * F_ * 2)
R_WV2 = R_A
vL16, vL16b = 20, 21
e(f"v_lshlrev_b32 {vr(vL16)}, 4, {vr(vL)}")
e(f"v_add_u32 {vr(vL16b)}, 4096, {vr(vL16)}")
RO = [T[9], T[10], T[11], T[12]]
e(f"s_add_u32 {sr(T[0])}, {sr(sMI)}, {sr(sNJ)}")
if args.norotd: e(f"s_mov_b32 {sr(T[0])}, 0")
for u in range(4):
    e(f"s_add_u32 {sr(T[1])}, {sr(T[0])}, {u}")
    e(f"s_and_b32 {sr(T[1])}, {sr(T[1])}, 3")
    e(f"s_mul_i32 {sr(RO[u])}, {sr(T[1])}, 5120")
e("v_min_u32 v16, 39, v0")
e("v_mul_u32_u24 v17, 13, v16")
e("v_lshrrev_b32 v17, 6, v17")
e("v_mul_u32_u24 v18, 5, v17")
e("v_sub_u32 v18, v16, v18")
e(f"s_lshr_b32 {sr(T[0])}, {sr(sMI)}, 1")
e(f"v_mov_b32 v19, {sr(T[0])}")
e(f"s_cmp_eq_u32 {sr(sWG)}, 0")
e("s_cselect_b64 vcc, -1, 0")
e("v_cndmask_b32 v17, v19, v17, vcc")
e("v_add_u32 v17, 40, v17")
e(f"v_mul_u32_u24 v17, {FL}, v17")
e("v_lshl_add_u32 v22, v18, 2, v17")
e(f"s_mul_i32 {sr(T[0])}, {sr(sNJ)}, 112")
e(f"s_add_u32 {sr(T[1])}, {sr(T[0])}, 111")
e(f"s_lshr_b32 {sr(T[0])}, {sr(T[0])}, 6")
e(f"s_lshr_b32 {sr(T[1])}, {sr(T[1])}, 6")
e(f"s_min_u32 {sr(T[1])}, {sr(T[1])}, 26")
e("v_lshrrev_b32 v16, 3, v0")
e(f"v_add_u32 v16, {sr(T[0])}, v16")
e(f"v_min_u32 v16, {sr(T[1])}, v16")
e("v_add_u32 v16, 8, v16")
e(f"v_mul_u32_u24 v16, {FL}, v16")
e("v_and_b32 v17, 7, v0")
e("v_lshl_add_u32 v23, v17, 2, v16")
vO4, vO2, vO4b, vO4c, vW2 = 24, 25, 26, 27, 28
e(f"s_lshl_b32 {sr(T[0])}, {sr(sMI)}, 2")
e(f"s_add_u32 {sr(T[0])}, {sr(T[0])}, {sr(sW)}")
sXO = T[2]
e(f"s_mul_i32 {sr(sXO)}, {sr(T[0])}, 40960")
e(f"s_mul_i32 {sr(T[0])}, {sr(T[0])}, {32*3456}")
e(f"s_mul_i32 {sr(T[1])}, {sr(sNJ)}, 224")
e(f"s_add_u32 {sr(T[6])}, {sr(T[0])}, {sr(T[1])}")
e(f"s_add_u32 {sr(T[7])}, {sr(T[6])}, {16*3456}")
e(f"v_mul_u32_u24 v16, 3456, {vr(vI)}")
e(f"v_lshl_add_u32 {vr(vO4)}, {vr(vQ)}, 4, v16")
e(f"v_lshl_add_u32 {vr(vO2)}, {vr(vQ)}, 3, v16")
e(f"v_mov_b32 v17, {HUGE:#x}")
if args.nostore:
    e(f"v_mov_b32 {vr(vO4)}, v17")
    e(f"v_mov_b32 {vr(vO2)}, v17")
e(f"s_cmp_eq_u32 {sr(sNJ)}, 15")
e("s_cselect_b64 vcc, -1, 0")
e(f"v_cndmask_b32 {vr(vO4c)}, {vr(vO4)}, v17, vcc")
e(f"v_cndmask_b32 {vr(vO2)}, {vr(vO2)}, v17, vcc")
e("s_mov_b32 vcc_lo, 0")
e(f"v_cndmask_b32 {vr(vO4b)}, {vr(vO4)}, v17, vcc")
e(f"v_add_u32 {vr(vW2)}, 0x10000, {vr(vL16)}")
e(f"v_add_u32 {vr(vW2+1)}, 0x20000, {vr(vL16)}")
sWO, sLa, sGa0, sGa1, sL6, sG6 = T[3], T[4], T[5], T[8], T[13], T[14]
e(f"s_mul_i32 {sr(sWO)}, {sr(sNJ)}, {7*20480}")
e(f"s_lshr_b32 {sr(T[0])}, {sr(sW)}, 1")
e(f"s_mul_i32 {sr(T[0])}, {sr(T[0])}, 20480")
e(f"s_add_u32 {sr(sWO)}, {sr(sWO)}, {sr(T[0])}")
e(f"s_and_b32 {sr(T[1])}, {sr(sW)}, 1")
e(f"s_mul_i32 {sr(sLa)}, {sr(T[1])}, 5120")
e(f"s_add_u32 {sr(sLa)}, {sr(sLa)}, {sr(T[0])}")
e(f"s_cmp_eq_u32 {sr(T[1])}, 0")
e(f"s_cselect_b32 {sr(sGa0)}, {sr(RO[0])}, {sr(RO[1])}")
e(f"s_cselect_b32 {sr(sGa1)}, {sr(RO[2])}, {sr(RO[3])}")
e(f"s_cmp_lt_u32 {sr(sW)}, 2")
e(f"s_cselect_b32 {sr(sG6)}, {sr(sGa0)}, {sr(sGa1)}")
e(f"s_add_u32 {sr(sGa0)}, {sr(sGa0)}, {sr(sWO)}")
e(f"s_add_u32 {sr(sGa1)}, {sr(sGa1)}, {sr(sWO)}")
e(f"s_sub_u32 {sr(sWO)}, {sr(sWO)}, {sr(T[0])}")
e(f"s_add_u32 {sr(sG6)}, {sr(sG6)}, {sr(sWO)}")
e(f"s_mul_i32 {sr(sL6)}, {sr(sW)}, 5120")
e("s_waitcnt vmcnt(0)")
e("s_barrier")
stamp(6)
e(f"s_cmp_lg_u32 {sr(sW)}, 0")
e("s_cbranch_scc1 L_nopollX")
flag_store(sFO, 16, 17)
poll(22, 17)
lab("L_nopollX")
e("s_barrier")
stamp(7)
for b in range(2):
    for u in range(4):
        e(f"s_add_u32 {sr(T[0])}, {sr(sXO)}, {sr(RO[u])}")
        if b: e(f"s_add_u32 {sr(T[0])}, {sr(T[0])}, 20480")
        for i in range(4):
            e(f"buffer_load_dwordx4 {ar((b*20+u*5+i)*4,4)}, {vr(vL16)}, {sr(R_XRF,4)}, {sr(T[0])} offen offset:{i*1024} sc1")
        e(f"buffer_load_dwordx4 {ar((b*20+u*5+4)*4,4)}, {vr(vL16b)}, {sr(R_XRF,4)}, {sr(T[0])} offen sc1")
e(f"s_cmp_lg_u32 {sr(sW)}, 0")
e("s_cbranch_scc1 L_nopollW")
poll(23, 17)
e(f"s_cmp_lg_u32 {sr(sWG)}, 0")
e("s_cbranch_scc1 L_nopollW")
e(f"s_mov_b32 {sr(T[0])}, {NONCE:#x}")
flag_store(T[0], 16, 17)
lab("L_nopollW")
e("s_barrier")
stamp(8)
stamp(1, "D")
def wdma(st):
    g = []
    if st < 6:
        lo = (st >> 1) * 40960 + (st & 1) * 10240
        pre = [f"s_add_u32 m0, {sr(sLa)}, {lo}", f"s_add_u32 {sr(T[0])}, {sr([sGa0, sGa1][st & 1])}, {(st >> 1) * 40960}"]
    else:
        pre = [f"s_add_u32 m0, {sr(sL6)}, {6*20480}", f"s_add_u32 {sr(T[0])}, {sr(sG6)}, {6*20480}"]
    for i in range(4):
        g.append(pre + [f"buffer_load_dwordx4 {vr(vL16)}, {sr(R_WV2,4)}, {sr(T[0])} offen offset:{i*1024} sc1 lds"]); pre = []
    g.append(["s_add_u32 m0, m0, 4096", "s_nop 0", f"buffer_load_dwordx4 {vr(vL16b)}, {sr(R_WV2,4)}, {sr(T[0])} offen sc1 lds"])
    return g
dorder = []
dq = []
for st in range(7):
    for g in wdma(st):
        if st < args.dpre:
            for x in g: e(x)
            dorder.append(("W", st))
        else:
            dq.append((st, g))
def wread(dst, off):
    base = [vL16, vW2, vW2+1][off >> 16]
    return f"ds_read_b128 {vr(dst,4)}, {vr(base)} offset:{off & 0xffff}"
DACC = 32
WB = 64
NB = 8
PK = 128
OF = args.outflag
steps = []
for st in range(6):
    G = st >> 1
    for kk in range(10):
        ks = (st & 1) * 10 + kk
        steps.append((st, [(2*G)*20480 + ks*1024, (2*G+1)*20480 + ks*1024], G, ks))
for kk in range(10):
    steps.append((6, [6*20480 + (2*kk)*1024, 6*20480 + (2*kk+1)*1024], 3, kk))
nst = len(steps)
AHEAD = NB // 2 - 1
stores_issued = 0
def epilogue(G):
    ab = DACC + (G & 1) * 16
    out = []
    if G < 3:
        vo = [vO4, vO4b, vO4c][G]
        for b in range(2):
            p = PK + b*4
            a0 = ab + b*4; a1 = ab + 8 + b*4
            out += [f"v_cvt_pk_bf16_f32 {vr(p)}, {vr(a0)}, {vr(a0+1)}", f"v_cvt_pk_bf16_f32 {vr(p+1)}, {vr(a0+2)}, {vr(a0+3)}",
                    f"v_cvt_pk_bf16_f32 {vr(p+2)}, {vr(a1)}, {vr(a1+1)}", f"v_cvt_pk_bf16_f32 {vr(p+3)}, {vr(a1+2)}, {vr(a1+3)}",
                    f"buffer_store_dwordx4 {vr(p,4)}, {vr(vo)}, {sr(R_OUT,4)}, {sr(T[6+b])} offen offset:{G*64} {OF}"]
    else:
        for b in range(2):
            p = PK + 8 + b*2
            a0 = ab + b*4; a1 = ab + 8 + b*4
            out += [f"v_pk_add_f32 {vr(a0,2)}, {vr(a0,2)}, {vr(a1,2)}", f"v_pk_add_f32 {vr(a0+2,2)}, {vr(a0+2,2)}, {vr(a1+2,2)}",
                    f"v_cvt_pk_bf16_f32 {vr(p)}, {vr(a0)}, {vr(a0+1)}", f"v_cvt_pk_bf16_f32 {vr(p+1)}, {vr(a0+2)}, {vr(a0+3)}",
                    f"buffer_store_dwordx2 {vr(p,2)}, {vr(vO2)}, {sr(R_OUT,4)}, {sr(T[6+b])} offen offset:192 {OF}"]
    return out
issued = 0
synced = -1
pending_epi = []
def issue_reads(upto):
    global issued, synced
    while issued <= upto and issued < nst:
        st = steps[issued][0]
        if st > synced:
            assert sum(1 for x in dorder if x == ("W", st)) == 5, st
            e(f"s_waitcnt vmcnt({len(dorder) - 1 - max(i for i, x in enumerate(dorder) if x == ('W', st))})")
            e("s_barrier")
            if st == 0: stamp(9)
            stamp(2 + st, "D")
            synced = st
        for j in range(2):
            e(wread(WB + ((issued*2+j) % NB)*4, steps[issued][1][j]))
        issued += 1
for n in range(nst):
    st, offs, G, ks = steps[n]
    issue_reads(n + AHEAD)
    out_reads = (issued - n - 1) * 2
    ab = DACC + (G & 1) * 16
    first = (ks == 0)
    for j in range(2):
        e(f"s_waitcnt lgkmcnt({out_reads + 1 - j})")
        wf = vr(WB + ((n*2+j) % NB)*4, 4)
        for b in range(2):
            kx = ks if G < 3 else 2*ks + j
            d = vr(ab + j*8 + b*4, 4)
            mfma(d, wf, ar((b*20 + kx)*4, 4), "0" if first else d)
            if dq and j == 0 and b == 0 and (n % args.dgap == 0):
                st_, g_ = dq.pop(0)
                for x in g_: e(x)
                dorder.append(("W", st_))
            elif pending_epi and ks >= 3:
                x = pending_epi.pop(0); e(x)
                if x.startswith("buffer_store"): dorder.append(("S",))
    last = (n + 1 == nst) or steps[n+1][2] != G
    if last:
        assert not pending_epi
        pending_epi = epilogue(G)
stamp(9, "D")
nop(8)
for x in pending_epi: e(x)
stamp(10)
stamp(10, "D")
if args.stamps:
    e("s_waitcnt vmcnt(0)")
    e(f"{'s_memtime' if args.cyc else 's_memrealtime'} s[10:11]")
    e("s_waitcnt lgkmcnt(0)")
    e(f"s_cmp_lg_u32 {sr(sW)}, 0")
    e("s_cbranch_scc1 L_end")
    srd(R_A, P_WS, 0x100000, STAMP_OFF)
    e(f"s_lshl_b32 {sr(T[0])}, {sr(sWG)}, 8")
    e(f"v_mov_b32 v16, {sr(T[0])}")
    e("s_mov_b64 exec, 1")
    for k in range(11):
        e(f"v_mov_b32 v18, {sr(ST0+2*k)}")
        e(f"v_mov_b32 v19, {sr(ST0+2*k+1)}")
        e(f"buffer_store_dwordx2 v[18:19], v16, {sr(R_A,4)}, 0 offen offset:{8*k}")
        e("s_nop 1")
    e("v_mov_b32 v18, s10")
    e("v_mov_b32 v19, s11")
    e(f"buffer_store_dwordx2 v[18:19], v16, {sr(R_A,4)}, 0 offen offset:88")
    e(f"s_cmp_lg_u32 {sr(sWG)}, {args.dbgwg}")
    e("s_cbranch_scc1 L_end")
    srd(R_B, P_DBG, 256)
    e("v_mov_b32 v16, 0")
    for k in range(1, 11):
        e(f"s_sub_u32 {sr(T[0])}, {sr(ST0+2*k)}, {sr(ST0)}")
        e(f"v_mov_b32 v18, {sr(T[0])}")
        e(f"buffer_store_dword v18, v16, {sr(R_B,4)}, 0 offen offset:{4*k}")
    e(f"s_sub_u32 {sr(T[0])}, s10, {sr(ST0)}")
    e(f"v_mov_b32 v18, {sr(T[0])}")
    e(f"buffer_store_dword v18, v16, {sr(R_B,4)}, 0 offen offset:44")
lab("L_end")
e("s_endpgm")
L.append('.section .rodata,"a"')
L.append(".p2align 6")
L.append(f".amdhsa_kernel {NAME}")
for x in ["next_free_vgpr 512", "next_free_sgpr 102", "accum_offset 256", "group_segment_fixed_size 0", "kernarg_size 72",
          "user_sgpr_count 2", "user_sgpr_kernarg_segment_ptr 1", "system_sgpr_workgroup_id_x 1"]:
    L.append("  .amdhsa_" + x)
L.append(".end_amdhsa_kernel")

import subprocess, re, tempfile, os
def finalize(L):
    flat = []
    for x in L: flat += x.split("\n")
    if args.noscout:
        return [x for x in flat if x != "@SCOUT@"]
    base = [x for x in flat if x != "@SCOUT@" and not x.startswith(".p2align 6")]
    base = [x for x in base]
    tmp = tempfile.mkdtemp()
    i0 = base.index('.section .rodata,"a"')
    open(tmp + "/a.s", "w").write("\n".join(base[:i0]) + "\n")
    subprocess.run(["clang", "-x", "assembler", "-target", "amdgcn-amd-amdhsa", "-mcpu=gfx950", "-c", tmp + "/a.s", "-o", tmp + "/a.o"], check=True)
    dis = subprocess.run(["llvm-objdump", "-d", "--mcpu=gfx950", tmp + "/a.o"], capture_output=True, text=True).stdout
    sizes = [4 * len(m.group(1).split()) for m in re.finditer(r"// [0-9A-F]{12}: ((?:[0-9A-F]{8} ?)+)", dis)]
    out = []; k = 0; since = 0; n = 0; started = False
    def isins(x): return x.startswith("  ") and not x.startswith("  ;") and not x.startswith("  .")
    nins = sum(1 for x in flat[:flat.index('.section .rodata,"a"')] if isins(x))
    assert nins == len(sizes), (nins, len(sizes))
    masked = False
    for x in flat:
        if x == "@SCOUT@":
            out.append(x); started = True; since = args.sgap - 300; continue
        if x == '.section .rodata,"a"': started = False
        if isins(x) and k < len(sizes):
            if started and since >= args.sgap and not x.strip().startswith("s_endpgm"):
                out.append(f"L_stub{n}:"); out.append("  s_cbranch_execz L_scret"); n += 1; since = 0
            since += sizes[k]; k += 1
        out.append(x)
    sc = [f"  s_cmp_lg_u32 {sr(sW)}, 3", "  s_cbranch_scc1 L_scdone", "  s_mov_b32 s0, 1", "  s_mov_b64 exec, 0"]
    for i in range(n):
        sc += [f"  s_cmp_eq_u32 {sr(sJ)}, {i}", f"  s_cbranch_scc1 L_stub{i}"]
    sc += ["L_scret:", "  s_cmp_eq_u32 s0, 1", "  s_cbranch_scc0 L_end", "  s_mov_b32 s0, 0", "  s_mov_b64 exec, -1", "L_scdone:"]
    assert n <= 27, n
    i = out.index("@SCOUT@")
    print(f"; {n} stubs", file=sys.stderr)
    return out[:i] + sc + out[i+1:]
open(args.o, "w").write("\n".join(finalize(L)) + "\n")
```

```python
import sys, argparse, math

ap = argparse.ArgumentParser()
ap.add_argument("-o", default="k.s")
ap.add_argument("--stamps", action="store_true")
ap.add_argument("--depth", type=int, default=3)
ap.add_argument("--xm", type=int, default=4)
ap.add_argument("--outflag", default="")
ap.add_argument("--nostore", action="store_true")
ap.add_argument("--dbgwg", type=int, default=0)
ap.add_argument("--spin", type=int, default=400000)
ap.add_argument("--nvpre", type=int, default=14)
ap.add_argument("--vlead", type=int, default=4)
ap.add_argument("--dpre", type=int, default=2)
ap.add_argument("--dgap", type=int, default=1)
ap.add_argument("--stampset", default="main")
ap.add_argument("--cyc", action="store_true")
ap.add_argument("--wsoff", type=lambda x: int(x, 0), default=0)
ap.add_argument("--nv1", type=int, default=6)
ap.add_argument("--x1", type=int, default=7)
ap.add_argument("--plan", default="[[('x',{2:0})], [('x',{3:1}),('v',{0:0,1:1,2:2,3:3})], [('x',{0:2,1:3,2:4,3:5}),('v',{0:4})], []]")
ap.add_argument("--ntq", default="nt")
ap.add_argument("--ntv", default="nt")
ap.add_argument("--ntx", default="")
ap.add_argument("--ntu", default="")
ap.add_argument("--noscout", action="store_true")
ap.add_argument("--sgap", type=int, default=900)
ap.add_argument("--norotc", action="store_true")
ap.add_argument("--norotd", action="store_true")
ap.add_argument("--nopf", action="store_true")
ap.add_argument("--pfearly", type=int, default=1)
args = ap.parse_args()

NAME = "standalone__weight_only_int_quip__prompt_kernel"
S_, D_, F_ = 2048, 640, 1728
WO = args.wsoff
WQF_OFF, WQF_SZ = WO, 2160 * 1024
WVF_OFF, WVF_SZ = WO + 0x240000, 109 * 20480
WVF_ALL = 112 * 20480
XRF_OFF, XRF_SZ = WO + 0x480000, 128 * 20480
FLG_OFF, FLG_SZ = WO + 0x700000, 0x10000
FL = 256
NONCE = 0x8000
STAMP_OFF = 0x8000000
HUGE = 0x7F000000

L = []
def e(s): L.append("  " + s)
def lab(s): L.append(s + ":")
def cm(s): L.append("  ; " + s)
def nop(n):
    while n > 0:
        k = min(n, 16); e(f"s_nop {k-1}"); n -= k
def vr(a, n=1): return f"v{a}" if n == 1 else f"v[{a}:{a+n-1}]"
def ar(a, n=1): return f"a{a}" if n == 1 else f"a[{a}:{a+n-1}]"
def sr(a, n=1): return f"s{a}" if n == 1 else f"s[{a}:{a+n-1}]"

sWG, sW, sE, sX, sJ, sR, sC = 2, 3, 4, 5, 6, 7, 8
P_X, P_QW, P_SC, P_ZR, P_U, P_V, P_OUT, P_DBG, P_WS = 16, 18, 20, 22, 24, 26, 28, 30, 32
R_A, R_B, R_Z, R_V, R_WQF, R_WVF, R_XRF, R_FLG, R_OUT = 36, 40, 44, 48, 52, 56, 60, 64, 68
T = [9, 10, 11, 12, 13, 14, 15, 34, 35, 72, 73, 74, 75, 76, 77, 78, 79]
ST0 = 80
sFO = T[15]
def stamp(k, grp="main"):
    if not args.stamps: return
    if k != 0 and grp != args.stampset: return
    e(f"{'s_memtime' if args.cyc else 's_memrealtime'} {sr(ST0+2*k,2)}")

def srd(r, pbase, size, off=0):
    if off:
        e(f"s_add_u32 {sr(r)}, {sr(pbase)}, {off:#x}")
        e(f"s_addc_u32 {sr(r+1)}, {sr(pbase+1)}, 0")
        e(f"s_and_b32 {sr(r+1)}, {sr(r+1)}, 0xffff")
    else:
        e(f"s_mov_b32 {sr(r)}, {sr(pbase)}")
        e(f"s_and_b32 {sr(r+1)}, {sr(pbase+1)}, 0xffff")
    e(f"s_mov_b32 {sr(r+2)}, {size:#x}")
    e(f"s_mov_b32 {sr(r+3)}, 0x20000")

pollid = [0]
def poll(voff, vtmp):
    i = pollid[0]; pollid[0] += 1
    cnt = T[16]
    e(f"s_mov_b32 {sr(cnt)}, {args.spin}")
    lab(f"L_poll{i}")
    e(f"buffer_load_dword {vr(vtmp)}, {vr(voff)}, {sr(R_FLG,4)}, 0 offen sc1")
    e("s_waitcnt vmcnt(0)")
    e(f"v_cmp_ne_u32 vcc, {sr(sE)}, {vr(vtmp)}")
    e("s_cmp_eq_u64 vcc, 0")
    e(f"s_cbranch_scc1 L_pollok{i}")
    e("s_sleep 1")
    e(f"s_sub_u32 {sr(cnt)}, {sr(cnt)}, 1")
    e(f"s_cmp_lg_u32 {sr(cnt)}, 0")
    e(f"s_cbranch_scc1 L_poll{i}")
    lab(f"L_pollok{i}")

def flag_store(soff_reg, va, vb):
    e(f"v_mov_b32 {vr(va)}, {sr(soff_reg)}")
    e(f"v_mov_b32 {vr(vb)}, {sr(sE)}")
    e("s_mov_b64 exec, 1")
    e(f"buffer_store_dword {vr(vb)}, {vr(va)}, {sr(R_FLG,4)}, 0 offen sc1")
    e("s_mov_b64 exec, -1")

def mfma(d, a, b, c):
    e(f"v_mfma_f32_16x16x32_bf16 {d}, {a}, {b}, {c}")

L.append(f"; @launch grid=(256,1,1) block=(256,1,1) lds=163840")
L.append('.amdgcn_target "amdgcn-amd-amdhsa--gfx950"')
L.append(".text")
L.append(f".globl {NAME}")
L.append(".p2align 8")
L.append(f".type {NAME},@function")
lab(NAME)
e(f"s_cmp_ge_u32 {sr(sWG)}, 256")
e("s_cbranch_scc1 L_end")
stamp(0)
e(f"s_load_dwordx16 s[16:31], s[0:1], 0")
e(f"s_load_dwordx2 {sr(P_WS,2)}, s[0:1], 64")
e("s_mov_b32 s0, 0")
if args.stamps:
    for k in range(2, 22): e(f"s_mov_b32 {sr(ST0+k)}, 0")
vL, vQ, vI = 0, 1, 2
e("v_lshrrev_b32 v1, 6, v0")
e("v_and_b32 v0, 63, v0")
e(f"v_readfirstlane_b32 {sr(sW)}, v1")
e(f"v_lshrrev_b32 {vr(vQ)}, 4, v0")
e(f"v_and_b32 {vr(vI)}, 15, v0")
e(f"s_and_b32 {sr(sX)}, {sr(sWG)}, 7")
e(f"s_lshr_b32 {sr(sJ)}, {sr(sWG)}, 3")
e(f"s_cmp_ge_u32 {sr(sJ)}, 27")
e("s_cbranch_scc1 L_roleB")

cm("================= role C: dequant slice, V preload, WV tile =================")
e(f"s_mul_i32 {sr(T[0])}, {sr(sX)}, 27")
e(f"s_add_u32 {sr(T[0])}, {sr(T[0])}, {sr(sJ)}")
e(f"s_and_b32 {sr(sR)}, {sr(T[0])}, 7")
e(f"s_lshr_b32 {sr(sC)}, {sr(T[0])}, 3")
vQO, vSO, vL16, vL16b = 3, 4, 5, 6
vQO2, vQR = 7, 22
vDV = 8
vTA = 12
vPFX, vPFV, vPD = 20, 21, 23
sM0 = T[12]
e("v_lshrrev_b32 v16, 3, v0")
e("v_mul_u32_u24 v16, 6912, v16")
e("v_and_b32 v17, 7, v0")
e(f"v_xor_b32 v17, v17, {vr(vQ)}")
e(f"v_lshl_add_u32 {vr(vQO)}, v17, 4, v16")
e("v_xor_b32 v17, 4, v17")
e(f"v_lshl_add_u32 {vr(vQO2)}, v17, 4, v16")
e(f"v_add_u32 {vr(vQO2)}, {8*6912 - 1024}, {vr(vQO2)}")
e(f"v_lshlrev_b32 {vr(vSO)}, 4, {vr(vQ)}")
e(f"v_mul_u32_u24 {vr(vPFX)}, 1280, v0")
sq, ss, so = T[2:5], T[5:8], T[8:11]
th, trb = T[11], T[13]
e(f"s_lshl_b32 {sr(T[15])}, {sr(sC)}, 1")
e(f"s_mul_i32 {sr(T[14])}, {sr(sR)}, 5")
e(f"s_add_u32 {sr(T[14])}, {sr(T[14])}, {sr(sW)}")
for k in range(3):
    if k == 0:
        e(f"s_mov_b32 {sr(trb)}, {sr(T[14])}")
        e(f"s_mov_b32 {sr(th)}, {sr(T[15])}")
    elif k == 1:
        e(f"s_cmp_ge_u32 {sr(sW)}, 1")
        e(f"s_cselect_b32 {sr(trb)}, -1, 4")
        e(f"s_addc_u32 {sr(th)}, {sr(T[15])}, 0")
        e(f"s_add_u32 {sr(trb)}, {sr(trb)}, {sr(T[14])}")
    else:
        e(f"s_add_u32 {sr(trb)}, {sr(T[14])}, 3")
        e(f"s_add_u32 {sr(th)}, {sr(T[15])}, 1")
    e(f"s_mul_i32 {sr(sq[k])}, {sr(trb)}, 110592")
    e(f"s_lshl_b32 {sr(T[1])}, {sr(th)}, 7")
    e(f"s_add_u32 {sr(sq[k])}, {sr(sq[k])}, {sr(T[1])}")
    e(f"s_lshr_b32 {sr(T[0])}, {sr(trb)}, 2")
    e(f"s_mul_i32 {sr(ss[k])}, {sr(T[0])}, 3456")
    e(f"s_lshr_b32 {sr(T[1])}, {sr(T[1])}, 1")
    e(f"s_add_u32 {sr(ss[k])}, {sr(ss[k])}, {sr(T[1])}")
e(f"s_cmp_ge_u32 {sr(sW)}, 2")
e(f"s_cselect_b32 {sr(sq[2])}, {HUGE:#x}, {sr(sq[2])}")
e(f"s_cselect_b32 {sr(ss[2])}, {HUGE:#x}, {sr(ss[2])}")
e(f"s_mul_i32 {sr(sM0)}, {sr(sW)}, 40960")
pfid = [0]
sC0, sNT, sMG = R_WVF, R_WVF + 1, R_WVF + 2
def pf_setup():
    e(f"s_mul_i32 {sr(T[0])}, {sr(sX)}, 27")
    e(f"s_lshr_b32 {sr(sC0)}, {sr(T[0])}, 3")
    e(f"s_add_u32 {sr(T[0])}, {sr(T[0])}, 34")
    e(f"s_lshr_b32 {sr(T[0])}, {sr(T[0])}, 3")
    e(f"s_sub_u32 {sr(sNT)}, {sr(T[0])}, {sr(sC0)}")
    e(f"s_movk_i32 {sr(sMG)}, 16384")
    e(f"s_cmp_eq_u32 {sr(sNT)}, 5")
    e(f"s_cselect_b32 {sr(sMG)}, 13108, {sr(sMG)}")
def pf_one(kind, jobs, tmp):
    n, k, sub = tmp
    i = pfid[0]; pfid[0] += 1
    e(f"s_movk_i32 {sr(n)}, 255")
    for w_, c_ in jobs.items():
        e(f"s_cmp_eq_u32 {sr(sW)}, {w_}")
        e(f"s_cselect_b32 {sr(n)}, {27*c_}, {sr(n)}")
    e(f"s_add_u32 {sr(n)}, {sr(n)}, {sr(sJ)}")
    if kind == "x":
        e(f"s_cmp_ge_u32 {sr(n)}, 140")
        e(f"s_cbranch_scc1 L_pfd{i}")
        e(f"s_mul_i32 {sr(k)}, {sr(n)}, 4682")
        e(f"s_lshr_b32 {sr(k)}, {sr(k)}, 16")
        e(f"s_mul_i32 {sr(sub)}, {sr(k)}, 14")
        e(f"s_sub_u32 {sr(sub)}, {sr(n)}, {sr(sub)}")
        e(f"s_cmp_ge_u32 {sr(sub)}, 4")
        e(f"s_cbranch_scc1 L_pfu{i}")
        e(f"s_lshl_b32 {sr(n)}, {sr(sX)}, 2")
        e(f"s_add_u32 {sr(n)}, {sr(n)}, {sr(sub)}")
        e(f"s_mul_i32 {sr(n)}, {sr(n)}, {64*1280}")
        e(f"s_lshl_b32 {sr(k)}, {sr(k)}, 7")
        e(f"s_add_u32 {sr(n)}, {sr(n)}, {sr(k)}")
        e(f"buffer_load_dword {vr(vPD)}, {vr(vPFX)}, {sr(R_XRF,4)}, {sr(n)} offen {args.ntx}")
        e(f"s_branch L_pfd{i}")
        lab(f"L_pfu{i}")
        e(f"s_mul_i32 {sr(n)}, {sr(k)}, {64*1280}")
        e(f"s_lshl_b32 {sr(sub)}, {sr(sub)}, 7")
        e(f"s_add_u32 {sr(n)}, {sr(n)}, {sr(sub)}")
        e(f"s_sub_u32 {sr(n)}, {sr(n)}, 512")
        e(f"buffer_load_dword {vr(vPD)}, {vr(vPFX)}, {sr(R_OUT,4)}, {sr(n)} offen {args.ntu}")
    else:
        e(f"s_mul_i32 {sr(k)}, {sr(n)}, {sr(sMG)}")
        e(f"s_lshr_b32 {sr(k)}, {sr(k)}, 16")
        e(f"s_cmp_ge_u32 {sr(k)}, 27")
        e(f"s_cbranch_scc1 L_pfd{i}")
        e(f"s_mul_i32 {sr(sub)}, {sr(k)}, {sr(sNT)}")
        e(f"s_sub_u32 {sr(sub)}, {sr(n)}, {sr(sub)}")
        e(f"s_add_u32 {sr(sub)}, {sr(sub)}, {sr(sC0)}")
        e(f"s_mul_i32 {sr(n)}, {sr(k)}, {64*3456}")
        e(f"s_lshl_b32 {sr(sub)}, {sr(sub)}, 7")
        e(f"s_add_u32 {sr(n)}, {sr(n)}, {sr(sub)}")
        e(f"buffer_load_dword {vr(vPD)}, {vr(vPFV)}, {sr(R_V,4)}, {sr(n)} offen {args.ntv}")
    lab(f"L_pfd{i}")
def pf_point(lst, tmp=None):
    if args.nopf: return
    for kind, jobs in lst: pf_one(kind, jobs, tmp if tmp else (T[2], T[3], T[4]))
PLAN = eval(args.plan)
stamp(1, "A")
e("s_waitcnt lgkmcnt(0)")
stamp(2, "A")
srd(R_XRF, P_X, S_ * D_ * 2)
srd(R_OUT, P_U, D_ * D_ * 2)
pf_point(PLAN[0], tmp=(T[8], T[9], T[10]))
srd(R_A, P_QW, D_ * F_ * 4)
QD, SD, ZD = 32, 56, 68
for k in range(3):
    e(f"s_add_u32 m0, {sr(sM0)}, {32768 + 2048*k}")
    e("s_nop 0")
    e(f"buffer_load_dwordx4 {vr(vQO)}, {sr(R_A,4)}, {sr(sq[k])} offen {args.ntq} lds")
    e(f"buffer_load_dwordx4 {vr(vQO2)}, {sr(R_A,4)}, {sr(sq[k])} offen offset:1024 {args.ntq} lds")
srd(R_B, P_SC, 10 * F_ * 2)
srd(R_Z, P_ZR, 10 * F_ * 2)
for k in range(3):
    e(f"buffer_load_dwordx4 {vr(SD+4*k,4)}, {vr(vSO)}, {sr(R_B,4)}, {sr(ss[k])} offen")
    e(f"buffer_load_dwordx4 {vr(ZD+4*k,4)}, {vr(vSO)}, {sr(R_Z,4)}, {sr(ss[k])} offen")
srd(R_V, P_V, F_ * F_ * 2)
e(f"v_mul_u32_u24 {vr(vPFV)}, 3456, v0")
if not args.nopf: pf_setup()
pf_point(PLAN[1])
cnt1 = [0, 0, 0, 0]
if not args.nopf:
    for kind, jobs in PLAN[1]:
        for w_, sl in jobs.items():
            assert (kind == "x" and sl <= 4) or (kind == "v" and sl <= 3)
            cnt1[w_] += 1
e(f"s_add_u32 s10, {sr(P_WS)}, {FLG_OFF+NONCE:#x}")
e(f"s_addc_u32 s11, {sr(P_WS+1)}, 0")
e(f"s_load_dword {sr(sE)}, s[10:11], 0")
stamp(3, "A")
L.append("@SCOUT@")
stamp(4, "A")
srd(R_WQF, P_WS, WQF_SZ, WQF_OFF)
srd(R_FLG, P_WS, FLG_SZ, FLG_OFF)
e(f"v_lshlrev_b32 {vr(vL16)}, 4, {vr(vL)}")
e(f"v_add_u32 {vr(vL16b)}, 4096, {vr(vL16)}")
e(f"s_mul_i32 {sr(T[14])}, {sr(sR)}, 54")
e(f"s_add_u32 {sr(T[14])}, {sr(T[14])}, {sr(T[15])}")
e(f"s_mul_i32 {sr(T[14])}, {sr(T[14])}, 5120")
e(f"s_lshl_b32 {sr(T[0])}, {sr(sW)}, 10")
e(f"s_add_u32 {sr(so[0])}, {sr(T[14])}, {sr(T[0])}")
e(f"s_add_u32 {sr(so[1])}, {sr(so[0])}, 4096")
e(f"s_add_u32 {sr(so[2])}, {sr(so[0])}, 8192")
e(f"s_cmp_ge_u32 {sr(sW)}, 2")
e(f"s_cselect_b32 {sr(so[2])}, {HUGE:#x}, {sr(so[2])}")
e(f"v_lshrrev_b32 v16, 1, {vr(vI)}")
e(f"v_lshlrev_b32 v17, 1, {vr(vQ)}")
e("v_xor_b32 v16, v16, v17")
e(f"v_lshlrev_b32 v17, 7, {vr(vI)}")
e(f"v_add_u32 v17, {sr(sM0)}, v17")
e(f"v_lshl_add_u32 {vr(vQR)}, v16, 4, v17")
e("v_xor_b32 v16, 1, v16")
e(f"v_lshl_add_u32 v24, v16, 4, v17")
e("v_lshrrev_b32 v16, 3, v0")
e("v_mul_u32_u24 v16, 3456, v16")
e("v_and_b32 v17, 7, v0")
e(f"v_and_b32 v18, 1, {vr(vQ)}")
e("v_lshlrev_b32 v18, 1, v18")
e("v_xor_b32 v17, v17, v18")
e("v_xor_b32 v18, 4, v17")
for t in range(4):
    e(f"v_lshl_add_u32 {vr(vDV+t)}, {vr(17 + (t&1))}, 4, v16")
    if t: e(f"v_add_u32 {vr(vDV+t)}, {t*(27648-1024)}, {vr(vDV+t)}")
sVB, sVM, sRot = T[11], T[13], T[7]
e(f"s_mul_i32 {sr(sVB)}, {sr(sW)}, 110592")
e(f"s_lshl_b32 {sr(T[1])}, {sr(sC)}, 7")
e(f"s_add_u32 {sr(sVB)}, {sr(sVB)}, {sr(T[1])}")
e("v_bfe_u32 v16, v0, 2, 2")
e("v_and_b32 v17, 3, v0")
e(f"v_lshlrev_b32 v19, 10, {vr(vQ)}")
e("v_lshl_add_u32 v19, v16, 7, v19")
e("v_lshl_add_u32 v19, v17, 3, v19")
e(f"v_add_u32 v19, {sr(sM0)}, v19")
e("v_lshrrev_b32 v16, 1, v16")
e(f"v_and_b32 v17, 1, {vr(vQ)}")
e("v_lshl_or_b32 v16, v17, 1, v16")
e(f"v_xor_b32 v16, {sr(sW)}, v16")
for cb in range(4):
    e(f"v_xor_b32 v17, {cb}, v16")
    e(f"v_lshl_add_u32 {vr(vTA+cb)}, v17, 5, v19")
e(f"s_mov_b32 {sr(sRot)}, 0")
e(f"s_mov_b32 {sr(sVM)}, {sr(sRot)}")
SU, ZU = 80, 104
OD = 128
stamp(5, "A")
levels = sorted(set(cnt1))
for lv in levels[:-1]:
    e(f"s_mov_b32 {sr(T[0])}, {sum(1 << w_ for w_ in range(4) if cnt1[w_] > lv)}")
    e(f"s_bitcmp1_b32 {sr(T[0])}, {sr(sW)}")
    e(f"s_cbranch_scc1 L_w1_{lv}")
    e(f"s_waitcnt vmcnt({lv})")
    lab(f"L_w1_{lv}")
e(f"s_waitcnt vmcnt({levels[-1]})")
stamp(1)
stamp(6, "A")
for k in range(3):
    e(f"ds_read_b128 {vr(QD+8*k,4)}, {vr(vQR)} offset:{32768 + 2048*k}")
    e(f"ds_read_b128 {vr(QD+8*k+4,4)}, v24 offset:{32768 + 2048*k}")
for k in range(3):
    for j in range(4):
        e(f"v_lshlrev_b32 {vr(ZU+8*k+2*j)}, 16, {vr(ZD+4*k+j)}")
        e(f"v_and_b32 {vr(ZU+8*k+2*j+1)}, 0xffff0000, {vr(ZD+4*k+j)}")
    if k == 0: e("s_waitcnt lgkmcnt(0)")
    for j in range(8):
        e(f"v_cvt_f32_i32 {vr(QD+8*k+j)}, {vr(QD+8*k+j)}")
    for j in range(4):
        e(f"v_pk_add_f32 {vr(QD+8*k+2*j,2)}, {vr(QD+8*k+2*j,2)}, {vr(ZU+8*k+2*j,2)} neg_lo:[0,1] neg_hi:[0,1]")
    for j in range(4):
        e(f"v_cvt_pk_bf16_f32 {vr(OD+4*k+j)}, {vr(QD+8*k+2*j)}, {vr(QD+8*k+2*j+1)}")
    for j in range(4):
        e(f"v_lshlrev_b32 {vr(SU+8*k+2*j)}, 16, {vr(SD+4*k+j)}")
        e(f"v_and_b32 {vr(SU+8*k+2*j+1)}, 0xffff0000, {vr(SD+4*k+j)}")
    for j in range(4):
        e(f"v_lshlrev_b32 {vr(QD+8*k+2*j)}, 16, {vr(OD+4*k+j)}")
        e(f"v_and_b32 {vr(QD+8*k+2*j+1)}, 0xffff0000, {vr(OD+4*k+j)}")
    for j in range(4):
        e(f"v_pk_mul_f32 {vr(QD+8*k+2*j,2)}, {vr(QD+8*k+2*j,2)}, {vr(SU+8*k+2*j,2)}")
    for j in range(4):
        e(f"v_cvt_pk_bf16_f32 {vr(OD+4*k+j)}, {vr(QD+8*k+2*j)}, {vr(QD+8*k+2*j+1)}")
    e(f"buffer_store_dwordx4 {vr(OD+4*k,4)}, {vr(vL16)}, {sr(R_WQF,4)}, {sr(so[k])} offen sc1")
stamp(7, "A")
def vdma(m):
    slot = m % 10
    e(f"s_mul_i32 {sr(T[0])}, {sr(sVM)}, 442368")
    e(f"s_add_u32 m0, {sr(sM0)}, {slot*4096}")
    e(f"s_add_u32 {sr(T[0])}, {sr(T[0])}, {sr(sVB)}")
    for t in range(4):
        e(f"buffer_load_dwordx4 {vr(vDV+t)}, {sr(R_V,4)}, {sr(T[0])} offen offset:{t*1024} {args.ntv} lds")
    e(f"s_add_u32 {sr(sVM)}, {sr(sVM)}, 1")
NVP = args.nvpre
NV1 = min(args.nv1, NVP)
n1 = min(NVP, 10)
for m in range(NV1): vdma(m)
e(f"s_add_u32 {sr(sE)}, {sr(sE)}, 1")
e(f"s_or_b32 {sr(sE)}, {sr(sE)}, 0x80000000")
e(f"s_mul_i32 {sr(T[1])}, {sr(sR)}, {FL}")
e(f"s_lshl_b32 {sr(T[0])}, {sr(sC)}, 2")
e(f"s_add_u32 {sr(T[1])}, {sr(T[1])}, {sr(T[0])}")
e(f"s_waitcnt vmcnt({4*NV1})")
stamp(8, "A")
e("s_barrier")
stamp(2)
stamp(9, "A")
e(f"s_cmp_lg_u32 {sr(sW)}, 0")
e("s_cbranch_scc1 L_noflagA")
flag_store(T[1], 16, 17)
lab("L_noflagA")
pf_point(PLAN[2])
def trread(m):
    slot = m % 10
    for cb in range(4):
        for a in range(2):
            e(f"ds_read_b64_tr_b16 {ar(16*m+4*cb+2*a,2)}, {vr(vTA+cb)} offset:{slot*4096+a*512}")
vo = [m for m in range(NV1) for _ in range(4)]
def vwait(m): e(f"s_waitcnt vmcnt({len(vo) - 1 - max(i for i, x in enumerate(vo) if x == m)})")
nread = 0
for m in range(NV1, NVP):
    if m >= 10:
        while nread <= m - 10 + 1 and nread < NVP:
            vwait(nread); trread(nread); nread += 1
        e("s_waitcnt lgkmcnt(8)")
    vdma(m); vo += [m] * 4
    if m == args.x1: pf_point(PLAN[3])
while nread < NVP:
    vwait(nread); trread(nread); nread += 1
stamp(3)
stamp(10, "A")
e(f"s_cmp_lg_u32 {sr(sW)}, 0")
e("s_cbranch_scc1 L_nopollA")
e("v_min_u32 v16, 26, v0")
e("v_lshlrev_b32 v16, 2, v16")
e(f"s_mul_i32 {sr(T[1])}, {sr(sR)}, {FL}")
e(f"v_add_u32 v16, {sr(T[1])}, v16")
poll(16, 17)
lab("L_nopollA")
if args.x1 >= NVP or args.x1 < NV1: pf_point(PLAN[3])
DEP = args.depth
ACC = 16
AB = 96
assert AB + DEP * 20 <= 256
sAB_, sAM, sAD = T[2], T[3], T[4]
e(f"s_mul_i32 {sr(sAB_)}, {sr(sR)}, 54")
e(f"s_add_u32 {sr(sAB_)}, {sr(sAB_)}, {sr(sW)}")
e(f"s_mul_i32 {sr(sAB_)}, {sr(sAB_)}, 5120")
e(f"s_cmp_ge_u32 {sr(sW)}, 2")
e(f"s_cselect_b32 {sr(sAD)}, 13, 99")
e(f"s_mov_b32 {sr(sAM)}, {sr(sRot)}")
e("s_waitcnt lgkmcnt(0)")
e("s_barrier")
stamp(4)
stamp(1, "C")
def aload_parts(m):
    b = AB + (m % DEP) * 20
    pre = [f"s_mul_i32 {sr(T[5])}, {sr(sAM)}, 20480", f"s_add_u32 {sr(T[5])}, {sr(T[5])}, {sr(sAB_)}",
           f"s_cmp_eq_u32 {sr(sAM)}, {sr(sAD)}", f"s_cselect_b32 {sr(T[5])}, {HUGE:#x}, {sr(T[5])}"]
    g = []
    for i in range(4):
        g.append([f"buffer_load_dwordx4 {vr(b+4*i,4)}, {vr(vL16)}, {sr(R_WQF,4)}, {sr(T[5])} offen offset:{i*1024} sc1"])
    g.append([f"buffer_load_dwordx4 {vr(b+16,4)}, {vr(vL16b)}, {sr(R_WQF,4)}, {sr(T[5])} offen sc1"])
    post = []
    if m < 13:
        post = [f"s_add_u32 {sr(sAM)}, {sr(sAM)}, 1"]
    return pre, g, post
def vdma_parts(m):
    slot = m % 10
    pre = [f"s_mul_i32 {sr(T[0])}, {sr(sVM)}, 442368", f"s_add_u32 m0, {sr(sM0)}, {slot*4096}", f"s_add_u32 {sr(T[0])}, {sr(T[0])}, {sr(sVB)}",
           f"s_add_u32 {sr(sVM)}, {sr(sVM)}, 1"]
    g = [[f"buffer_load_dwordx4 {vr(vDV+t)}, {sr(R_V,4)}, {sr(T[0])} offen offset:{t*1024} {args.ntv} lds"] for t in range(4)]
    return pre, g
order = []
def younger_than(key):
    return len(order) - 1 - max(i for i, x in enumerate(order) if x == key)
VLEAD = args.vlead
for m in range(DEP):
    if NVP <= m < min(14, VLEAD):
        vdma(m); order.extend([("V", m)] * 4)
    pre, g, post = aload_parts(m)
    for x in pre: e(x)
    for i in range(5):
        e(g[i][0]); order.append(("A", m, i))
    for x in post: e(x)
for m in range(max(NVP, DEP), min(14, VLEAD)):
    vdma(m); order.extend([("V", m)] * 4)
for m in range(14):
    b = AB + (m % DEP) * 20
    if m in (0, 1, 2, 4, 6, 8, 10, 12): stamp({0: 2, 1: 3, 2: 4, 4: 5, 6: 6, 8: 7, 10: 8, 12: 9}[m], "C")
    if m + 1 < 14 and m + 1 >= NVP:
        e(f"s_waitcnt vmcnt({younger_than(('V', m+1))})")
        trq = []
        for cb in range(4):
            for a in range(2):
                trq.append(f"ds_read_b64_tr_b16 {ar(16*(m+1)+4*cb+2*a,2)}, {vr(vTA+cb)} offset:{((m+1)%10)*4096+a*512}")
    else:
        trq = []
    if m >= NVP: e("s_waitcnt lgkmcnt(0)")
    fill = []
    if m + DEP < 14:
        pre, g, post = aload_parts(m + DEP)
        for i, x in enumerate(pre): fill.append((i, [x], None))
        for i in range(5): fill.append((4*i + 3, g[i], ("A", m + DEP, i)))
        apost = post
    else:
        apost = []
    mv = m + VLEAD
    if NVP <= mv < 14 and mv >= VLEAD:
        pre, g = vdma_parts(mv)
        fill.append((4, pre, None))
        for t in range(4): fill.append((5 + 4*t, g[t], ("V", mv)))
    for i, x in enumerate(trq): fill.append((2*i + 1, [x], None))
    for i in range(5):
        e(f"s_waitcnt vmcnt({younger_than(('A', m, i))})")
        for cb in range(4):
            d = vr(ACC + (i*4+cb)*4, 4)
            mfma(d, vr(b+4*i, 4), ar(16*m+4*cb, 4), d if m else "0")
            for (sl, ins, key) in fill:
                if sl == i*4 + cb:
                    for x in ins: e(x)
                    if key: order.append(key)
    for x in apost: e(x)
stamp(5)
stamp(10, "C")
for j in range(1, 4):
    e(f"s_xor_b32 {sr(T[1])}, {sr(sW)}, {j}")
    e(f"s_mul_i32 {sr(T[1])}, {sr(T[1])}, 15360")
    e(f"v_add_u32 {vr(7+j)}, {sr(T[1])}, {vr(vL16)}")
e(f"s_mul_i32 {sr(T[1])}, {sr(sW)}, 15360")
e(f"v_add_u32 v7, {sr(T[1])}, {vr(vL16)}")
if NVP < 14: e("s_barrier")
nop(2)
for j in range(1, 4):
    for i in range(5):
        e(f"ds_write_b128 {vr(7+j)}, {vr(ACC+(i*4+j)*4,4)} offset:{(j-1)*5120 + i*1024}")
srd(R_WVF, P_WS, WVF_ALL, WVF_OFF)
gb, nj, tb = T[4], T[5], T[6]
e(f"s_lshl_b32 {sr(gb)}, {sr(sC)}, 2")
e(f"s_add_u32 {sr(gb)}, {sr(gb)}, {sr(sW)}")
e(f"s_mul_i32 {sr(nj)}, {sr(gb)}, 9363")
e(f"s_lshr_b32 {sr(nj)}, {sr(nj)}, 16")
e(f"s_mul_i32 {sr(T[1])}, {sr(nj)}, 7")
e(f"s_sub_u32 {sr(tb)}, {sr(gb)}, {sr(T[1])}")
e(f"s_and_b32 {sr(T[0])}, {sr(tb)}, 6")
e(f"s_add_u32 {sr(T[1])}, {sr(T[1])}, {sr(T[0])}")
e(f"s_mul_i32 {sr(T[1])}, {sr(T[1])}, 20480")
e(f"s_and_b32 {sr(T[0])}, {sr(tb)}, 1")
e(f"s_lshl_b32 {sr(T[0])}, {sr(T[0])}, 7")
e(f"s_add_u32 {sr(T[1])}, {sr(T[1])}, {sr(T[0])}")
e(f"s_mul_i32 {sr(T[0])}, {sr(sR)}, 2560")
e(f"s_add_u32 {sr(T[7])}, {sr(T[1])}, {sr(T[0])}")
e(f"v_bfe_u32 v12, {vr(vI)}, 2, 1")
e("v_mul_u32_u24 v12, 20480, v12")
e(f"v_lshrrev_b32 v13, 3, {vr(vI)}")
e("v_lshl_add_u32 v12, v13, 6, v12")
e(f"v_and_b32 v13, 3, {vr(vI)}")
e("v_lshl_add_u32 v12, v13, 4, v12")
e(f"v_lshlrev_b32 v13, 4, {vr(vI)}")
e(f"s_cmp_eq_u32 {sr(tb)}, 6")
e("s_cselect_b64 vcc, -1, 0")
e("v_cndmask_b32 v12, v12, v13, vcc")
e(f"v_and_b32 v13, 1, {vr(vQ)}")
e(f"v_lshrrev_b32 v14, 1, {vr(vQ)}")
e("v_lshl_add_u32 v12, v14, 8, v12")
e("v_lshl_add_u32 v15, v13, 3, v12")
e("v_lshl_add_u32 v12, v13, 9, v12")
e("s_waitcnt lgkmcnt(0)")
e("s_barrier")
for d in range(3):
    for i in range(5):
        e(f"ds_read_b128 {vr(116+d*20+4*i,4)}, v7 offset:{d*5120 + i*1024}")
for d in range(3):
    for i in range(5):
        e(f"s_waitcnt lgkmcnt({14 - d*5 - i})")
        for h in range(2):
            a_ = ACC + i*16 + 2*h
            e(f"v_pk_add_f32 {vr(a_,2)}, {vr(a_,2)}, {vr(116+d*20+4*i+2*h,2)}")
for i in range(5):
    a_ = ACC + i*16
    e(f"v_cvt_pk_bf16_f32 {vr(176+2*i)}, {vr(a_)}, {vr(a_+1)}")
    e(f"v_cvt_pk_bf16_f32 {vr(176+2*i+1)}, {vr(a_+2)}, {vr(a_+3)}")
e(f"buffer_store_dwordx2 {vr(184,2)}, v15, {sr(R_WVF,4)}, {sr(T[7])} offen offset:2048 sc1")
nop(1)
for p in range(2):
    e(f"v_permlane16_swap_b32 {vr(176+4*p)}, {vr(176+4*p+2)}")
    e(f"v_permlane16_swap_b32 {vr(176+4*p+1)}, {vr(176+4*p+3)}")
    e(f"buffer_store_dwordx4 {vr(176+4*p,4)}, v12, {sr(R_WVF,4)}, {sr(T[7])} offen offset:{p*1024} sc1")
e(f"s_add_u32 {sr(sFO)}, {sr(sC)}, 8")
e(f"s_mul_i32 {sr(sFO)}, {sr(sFO)}, {FL}")
e(f"s_lshl_b32 {sr(T[0])}, {sr(sR)}, 2")
e(f"s_add_u32 {sr(sFO)}, {sr(sFO)}, {sr(T[0])}")
e("s_branch L_phaseD")

lab("L_roleB")
cm("================= role B: xr^T tile (128 e x 256 s) =================")
sP, sT = sR, sC
e(f"s_mov_b32 {sr(sP)}, {sr(sX)}")
e(f"s_sub_u32 {sr(sT)}, {sr(sJ)}, 27")
vDU, vDX, vAA, vBA = 4, 8, 12, 16
e(f"v_mul_u32_u24 v20, 1280, {vr(vQ)}")
for t in range(4):
    e(f"v_lshlrev_b32 v21, 1, {vr(vQ)}")
    if t >= 2: e("v_or_b32 v21, 8, v21")
    e(f"v_xor_b32 v21, v21, {vr(vI)}")
    e(f"v_lshl_add_u32 {vr(vDU+t)}, v21, 4, v20")
    if t: e(f"v_add_u32 {vr(vDU+t)}, {t*(5120-1024)}, {vr(vDU+t)}")
e("v_lshrrev_b32 v20, 3, v0")
e("v_mul_u32_u24 v20, 1280, v20")
e("v_and_b32 v21, 7, v0")
e(f"v_xor_b32 v21, v21, {vr(vQ)}")
e("v_xor_b32 v22, 4, v21")
for t in range(4):
    e(f"v_lshl_add_u32 {vr(vDX+t)}, {vr(21+(t&1))}, 4, v20")
    if t: e(f"v_add_u32 {vr(vDX+t)}, {t*(10240-1024)}, {vr(vDX+t)}")
sUO, sXO, sXO2, sMU, sMX, sK, sDl, sSl, sRs = T[2], T[3], T[4], T[5], T[6], T[7], T[8], T[9], T[10]
e(f"s_mul_i32 {sr(sUO)}, {sr(sW)}, {16*1280}")
e(f"s_lshl_b32 {sr(T[1])}, {sr(sT)}, 8")
e(f"s_add_u32 {sr(sUO)}, {sr(sUO)}, {sr(T[1])}")
e(f"s_lshl_b32 {sr(sXO)}, {sr(sP)}, 2")
e(f"s_add_u32 {sr(sXO)}, {sr(sXO)}, {sr(sW)}")
e(f"s_mul_i32 {sr(sXO)}, {sr(sXO)}, {64*1280}")
e(f"s_lshl_b32 {sr(sMU)}, {sr(sW)}, 12")
e(f"s_lshl_b32 {sr(sMX)}, {sr(sW)}, 13")
e(f"s_add_u32 {sr(sMX)}, {sr(sMX)}, 16384")
e("s_waitcnt lgkmcnt(0)")
stamp(1, "B")
srd(R_A, P_X, S_ * D_ * 2)
srd(R_B, P_U, D_ * D_ * 2)
def bdma(part, slot_imm=None):
    out = []
    def m0(base, add):
        if slot_imm is not None:
            return [f"s_add_u32 m0, {sr(base)}, {slot_imm + add}"]
        r = [f"s_add_u32 m0, {sr(base)}, {sr(sSl)}"]
        if add: r.append(f"s_add_u32 m0, m0, {add}")
        return r
    if part == 0:
        g = m0(sMU, 0) + [f"s_add_u32 {sr(sXO2)}, {sr(sXO)}, {32*1280}"]
        for t in range(4):
            g.append(f"buffer_load_dwordx4 {vr(vDU+t)}, {sr(R_B,4)}, {sr(sUO)} offen offset:{t*1024} {args.ntu} lds"); out.append(g); g = []
        g = m0(sMX, 0) + [f"s_add_u32 {sr(sUO)}, {sr(sUO)}, {64*1280}"]
        for t in range(2):
            g.append(f"buffer_load_dwordx4 {vr(vDX+t)}, {sr(R_A,4)}, {sr(sXO)} offen offset:{t*1024} {args.ntx} lds"); out.append(g); g = []
    else:
        g = []
        for t in range(2, 4):
            g.append(f"buffer_load_dwordx4 {vr(vDX+t)}, {sr(R_A,4)}, {sr(sXO)} offen offset:{t*1024} {args.ntx} lds"); out.append(g); g = []
        g = m0(sMX, 4096) + [f"s_add_u32 {sr(sXO)}, {sr(sXO)}, 128"]
        for t in range(4):
            g.append(f"buffer_load_dwordx4 {vr(vDX+t)}, {sr(R_A,4)}, {sr(sXO2)} offen offset:{t*1024} {args.ntx} lds"); out.append(g); g = []
    return out
for st, part in ((0, 0), (0, 1), (1, 0)):
    for g in bdma(part, st * 49152):
        for x in g: e(x)
e(f"s_add_u32 s10, {sr(P_WS)}, {FLG_OFF+NONCE:#x}")
L.pop()
e(f"s_add_u32 s72, {sr(P_WS)}, {FLG_OFF+NONCE:#x}")
L.pop()
stamp(2, "B")
e(f"s_add_u32 s76, {sr(P_WS)}, {FLG_OFF+NONCE:#x}")
e(f"s_addc_u32 s77, {sr(P_WS+1)}, 0")
e(f"s_load_dword {sr(sE)}, s[76:77], 0")
srd(R_FLG, P_WS, FLG_SZ, FLG_OFF)
e("v_bfe_u32 v20, v0, 2, 2")
e("v_and_b32 v21, 3, v0")
e(f"v_lshlrev_b32 v22, 11, {vr(vQ)}")
e("v_lshl_add_u32 v22, v20, 8, v22")
e("v_lshl_add_u32 v22, v21, 3, v22")
e(f"v_and_b32 v21, 1, {vr(vQ)}")
e("v_lshl_or_b32 v20, v21, 2, v20")
e(f"s_and_b32 {sr(T[1])}, {sr(sW)}, 1")
e(f"s_lshl_b32 {sr(T[1])}, {sr(T[1])}, 2")
e(f"v_xor_b32 v20, {sr(T[1])}, v20")
for eb in range(4):
    e(f"v_xor_b32 v21, {eb}, v20")
    e(f"v_lshl_add_u32 {vr(vAA+eb)}, v21, 5, v22")
e(f"s_lshr_b32 {sr(T[1])}, {sr(sW)}, 1")
e(f"s_lshl_b32 {sr(T[1])}, {sr(T[1])}, 14")
e(f"s_add_u32 {sr(T[1])}, {sr(T[1])}, 16384")
e(f"v_lshlrev_b32 v22, 7, {vr(vI)}")
e(f"v_add_u32 v22, {sr(T[1])}, v22")
e(f"v_lshrrev_b32 v20, 1, {vr(vI)}")
e(f"v_xor_b32 v20, v20, {vr(vQ)}")
e(f"v_lshl_add_u32 {vr(vBA)}, v20, 4, v22")
e("v_xor_b32 v20, 4, v20")
e(f"v_lshl_add_u32 {vr(vBA+1)}, v20, 4, v22")
BACC = 128
sXS, vXS = T[11], 18
srd(R_XRF, P_WS, XRF_SZ, XRF_OFF)
e(f"s_lshl_b32 {sr(sXS)}, {sr(sP)}, 1")
e(f"s_lshr_b32 {sr(T[0])}, {sr(sW)}, 1")
e(f"s_add_u32 {sr(sXS)}, {sr(sXS)}, {sr(T[0])}")
e(f"s_mul_i32 {sr(sXS)}, {sr(sXS)}, {8*20480}")
e(f"s_lshl_b32 {sr(T[0])}, {sr(sT)}, 12")
e(f"s_add_u32 {sr(sXS)}, {sr(sXS)}, {sr(T[0])}")
e(f"s_and_b32 {sr(T[0])}, {sr(sW)}, 1")
e(f"s_lshl_b32 {sr(T[0])}, {sr(T[0])}, 11")
e(f"s_add_u32 {sr(sXS)}, {sr(sXS)}, {sr(T[0])}")
e(f"v_and_b32 v20, 1, {vr(vQ)}")
e(f"v_lshrrev_b32 v21, 1, {vr(vQ)}")
e(f"v_lshlrev_b32 {vr(vXS)}, 4, {vr(vI)}")
e(f"v_lshl_add_u32 {vr(vXS)}, v21, 8, {vr(vXS)}")
e(f"v_lshl_add_u32 {vr(vXS)}, v20, 9, {vr(vXS)}")
e(f"s_add_u32 {sr(sFO)}, {sr(sP)}, 40")
e(f"s_mul_i32 {sr(sFO)}, {sr(sFO)}, {FL}")
e(f"s_lshl_b32 {sr(T[0])}, {sr(sT)}, 2")
e(f"s_add_u32 {sr(sFO)}, {sr(sFO)}, {sr(T[0])}")
e("s_waitcnt lgkmcnt(0)")
e(f"s_add_u32 {sr(sE)}, {sr(sE)}, 1")
e(f"s_or_b32 {sr(sE)}, {sr(sE)}, 0x80000000")
def breads(kk, buf):
    b = buf * 48
    out = []
    for eb in range(4):
        for a in range(2):
            out.append(f"ds_read_b64_tr_b16 {ar(b+4*eb+2*a,2)}, {vr(vAA+eb)} offset:{kk*8192+a*1024}")
    for sb in range(8):
        out.append(f"ds_read_b128 {ar(b+16+4*sb,4)}, {vr(vBA+kk)} offset:{sb*2048}")
    return out
def bmfmas(buf, zero=False):
    b = buf * 48
    out = []
    for sb in range(8):
        for eb in range(4):
            d = vr(BACC + (sb*4+eb)*4, 4)
            out.append(f"v_mfma_f32_16x16x32_bf16 {d}, {ar(b+4*eb,4)}, {ar(b+16+4*sb,4)}, {'0' if zero else d}")
    return out
stamp(3, "B")
e(f"s_mov_b32 {sr(sK)}, 0")
e(f"s_mov_b32 {sr(sSl)}, {2*49152}")
e(f"s_mov_b32 {sr(sRs)}, 0")
e(f"s_mov_b32 {sr(sDl)}, 49152")
e("s_waitcnt vmcnt(6)")
e("s_barrier")
stamp(4, "B")
stamp(1)
for x in breads(0, 0): e(x)
e("s_waitcnt lgkmcnt(0)")
adv = [f"v_add_u32 {vr(vAA+i)}, {sr(sDl)}, {vr(vAA+i)}" for i in range(4)]
adv += [f"v_add_u32 {vr(vBA+i)}, {sr(sDl)}, {vr(vBA+i)}" for i in range(2)]
def place(mm, rd, dm, extra, dstart=2, dstep=5, dpos=None):
    if dpos is None: dpos = [dstart + dstep*i for i in range(len(dm))]
    dpos = dict(zip(dpos, dm))
    rq = list(rd); xq = list(extra)
    for i, x in enumerate(mm):
        e(x)
        if i in dpos:
            for y in dpos[i]: e(y)
        elif rq: e(rq.pop(0))
        elif xq: e(xq.pop(0))
    for y in rq + xq: e(y)
place(bmfmas(0, True), breads(1, 1), bdma(1, 49152) + bdma(0), adv, dpos=[0, 2, 4, 6, 8, 10, 13, 16, 19, 22, 25, 28])
e("s_branch L_bmid")
L.append(".p2align 6")
lab("L_bloop")
mid = [f"s_mov_b32 {sr(sDl)}, 49152", f"s_cmp_eq_u32 {sr(sRs)}, {2*49152}",
       f"s_cselect_b32 {sr(sDl)}, {(-2*49152) & 0xffffffff:#x}, {sr(sDl)}"]
place(bmfmas(0), breads(1, 1), bdma(0), ["\n  ".join(mid)] + adv)
lab("L_bmid")
e("s_waitcnt vmcnt(6) lgkmcnt(0)")
e("s_barrier")
tail = [f"s_add_u32 {sr(sK)}, {sr(sK)}, 1", f"s_mov_b32 {sr(T[0])}, {sr(sRs)}", f"s_add_u32 {sr(sRs)}, {sr(sRs)}, {sr(sDl)}"]
place(bmfmas(1), breads(0, 0), bdma(1), tail)
e(f"s_mov_b32 {sr(sSl)}, {sr(T[0])}")
if args.stamps and args.stampset == "B":
    for kk, st_ in ((1, 5), (3, 6), (5, 7), (8, 8)):
        e(f"s_cmp_lg_u32 {sr(sK)}, {kk}")
        e(f"s_cbranch_scc1 L_bst{kk}")
        stamp(st_, "B")
        lab(f"L_bst{kk}")
e(f"s_cmp_ge_u32 {sr(sK)}, 8")
e(f"s_cselect_b32 {sr(sUO)}, {HUGE:#x}, {sr(sUO)}")
e(f"s_cselect_b32 {sr(sXO)}, {HUGE:#x}, {sr(sXO)}")
e(f"s_cmp_lt_u32 {sr(sK)}, 9")
e("s_waitcnt lgkmcnt(0)")
e("s_cbranch_scc1 L_bloop")
stamp(9, "B")
def icount(): return sum(x.count("\n") + 1 for x in L if x.startswith("  ") and not x.startswith("  ;"))
m0_, m1_ = bmfmas(0), bmfmas(1)
rq = breads(1, 1)
groups = [(0, 0), (1, 0), (2, 0), (3, 0), (0, 1), (1, 1), (2, 1), (3, 1)] + [(sb, kk) for sb in range(4, 8) for kk in range(2)]
done_at = {}
eq = []
def bepi(sb):
    out = []
    for p in range(2):
        o = 32 + (sb*2+p)*4
        for h in range(2):
            a_ = BACC + (sb*4+2*p+h)*4
            out.append((f"v_cvt_pk_bf16_f32 {vr(o+2*h)}, {vr(a_)}, {vr(a_+1)}", (sb, 2*p+h)))
            out.append((f"v_cvt_pk_bf16_f32 {vr(o+2*h+1)}, {vr(a_+2)}, {vr(a_+3)}", (sb, 2*p+h)))
    for p in range(2):
        o = 32 + (sb*2+p)*4
        out.append((f"v_permlane16_swap_b32 {vr(o)}, {vr(o+2)}", None))
        out.append((f"v_permlane16_swap_b32 {vr(o+1)}, {vr(o+3)}", None))
        out.append((f"buffer_store_dwordx4 {vr(o,4)}, {vr(vXS)}, {sr(R_XRF,4)}, {sr(sXS)} offen offset:{p*1024} sc1", None))
    if sb < 7: out.append((f"s_add_u32 {sr(sXS)}, {sr(sXS)}, 20480", None))
    return out
def pop_epi(force=False):
    if not eq: return False
    x, dep = eq[0]
    if dep is not None:
        d = icount() - done_at[dep]
        if d < 9:
            if not force: return False
            nop(9 - d)
    eq.pop(0); e(x); return True
for (sb, kk) in groups:
    if kk == 1: e(f"s_waitcnt lgkmcnt({7 - sb})")
    for eb in range(4):
        e((m0_, m1_)[kk][sb*4+eb])
        if kk == 1: done_at[(sb, eb)] = icount()
        if rq: e(rq.pop(0))
        else:
            pop_epi(); pop_epi()
    if kk == 1: eq += bepi(sb)
while eq: pop_epi(True)
stamp(5)
stamp(10, "B")

lab("L_phaseD")
cm("================= phase D: y tile (128 s x 112 g) =================")
cm("set-up first (overlaps the drain of this workgroup's hand-off stores), then publish the flag")
XM = args.xm; XN = 32 // XM
sMI, sNJ = sR, sC
lxn = int(math.log2(XN)); gx = 16 // XN
e(f"s_lshr_b32 {sr(T[0])}, {sr(sX)}, {int(math.log2(gx))}")
e(f"s_and_b32 {sr(T[1])}, {sr(sX)}, {gx-1}")
e(f"s_mul_i32 {sr(sMI)}, {sr(T[0])}, {XM}")
e(f"s_lshr_b32 {sr(T[0])}, {sr(sJ)}, {lxn}")
e(f"s_add_u32 {sr(sMI)}, {sr(sMI)}, {sr(T[0])}")
e(f"s_mul_i32 {sr(sNJ)}, {sr(T[1])}, {XN}")
e(f"s_and_b32 {sr(T[0])}, {sr(sJ)}, {XN-1}")
e(f"s_add_u32 {sr(sNJ)}, {sr(sNJ)}, {sr(T[0])}")
srd(R_XRF, P_WS, XRF_SZ, XRF_OFF)
srd(R_A, P_WS, WVF_SZ, WVF_OFF)
srd(R_OUT, P_OUT, S_ * F_ * 2)
R_WV2 = R_A
vL16, vL16b = 20, 21
e(f"v_lshlrev_b32 {vr(vL16)}, 4, {vr(vL)}")
e(f"v_add_u32 {vr(vL16b)}, 4096, {vr(vL16)}")
RO = [T[9], T[10], T[11], T[12]]
e(f"s_add_u32 {sr(T[0])}, {sr(sMI)}, {sr(sNJ)}")
if args.norotd: e(f"s_mov_b32 {sr(T[0])}, 0")
for u in range(4):
    e(f"s_add_u32 {sr(T[1])}, {sr(T[0])}, {u}")
    e(f"s_and_b32 {sr(T[1])}, {sr(T[1])}, 3")
    e(f"s_mul_i32 {sr(RO[u])}, {sr(T[1])}, 5120")
e("v_min_u32 v16, 39, v0")
e("v_mul_u32_u24 v17, 13, v16")
e("v_lshrrev_b32 v17, 6, v17")
e("v_mul_u32_u24 v18, 5, v17")
e("v_sub_u32 v18, v16, v18")
e(f"s_lshr_b32 {sr(T[0])}, {sr(sMI)}, 1")
e(f"v_mov_b32 v19, {sr(T[0])}")
e(f"s_cmp_eq_u32 {sr(sWG)}, 0")
e("s_cselect_b64 vcc, -1, 0")
e("v_cndmask_b32 v17, v19, v17, vcc")
e("v_add_u32 v17, 40, v17")
e(f"v_mul_u32_u24 v17, {FL}, v17")
e("v_lshl_add_u32 v22, v18, 2, v17")
e(f"s_mul_i32 {sr(T[0])}, {sr(sNJ)}, 112")
e(f"s_add_u32 {sr(T[1])}, {sr(T[0])}, 111")
e(f"s_lshr_b32 {sr(T[0])}, {sr(T[0])}, 6")
e(f"s_lshr_b32 {sr(T[1])}, {sr(T[1])}, 6")
e(f"s_min_u32 {sr(T[1])}, {sr(T[1])}, 26")
e("v_lshrrev_b32 v16, 3, v0")
e(f"v_add_u32 v16, {sr(T[0])}, v16")
e(f"v_min_u32 v16, {sr(T[1])}, v16")
e("v_add_u32 v16, 8, v16")
e(f"v_mul_u32_u24 v16, {FL}, v16")
e("v_and_b32 v17, 7, v0")
e("v_lshl_add_u32 v23, v17, 2, v16")
vO4, vO2, vO4b, vO4c, vW2 = 24, 25, 26, 27, 28
e(f"s_lshl_b32 {sr(T[0])}, {sr(sMI)}, 2")
e(f"s_add_u32 {sr(T[0])}, {sr(T[0])}, {sr(sW)}")
sXO = T[2]
e(f"s_mul_i32 {sr(sXO)}, {sr(T[0])}, 40960")
e(f"s_mul_i32 {sr(T[0])}, {sr(T[0])}, {32*3456}")
e(f"s_mul_i32 {sr(T[1])}, {sr(sNJ)}, 224")
e(f"s_add_u32 {sr(T[6])}, {sr(T[0])}, {sr(T[1])}")
e(f"s_add_u32 {sr(T[7])}, {sr(T[6])}, {16*3456}")
e(f"v_mul_u32_u24 v16, 3456, {vr(vI)}")
e(f"v_lshl_add_u32 {vr(vO4)}, {vr(vQ)}, 4, v16")
e(f"v_lshl_add_u32 {vr(vO2)}, {vr(vQ)}, 3, v16")
e(f"v_mov_b32 v17, {HUGE:#x}")
if args.nostore:
    e(f"v_mov_b32 {vr(vO4)}, v17")
    e(f"v_mov_b32 {vr(vO2)}, v17")
e(f"s_cmp_eq_u32 {sr(sNJ)}, 15")
e("s_cselect_b64 vcc, -1, 0")
e(f"v_cndmask_b32 {vr(vO4c)}, {vr(vO4)}, v17, vcc")
e(f"v_cndmask_b32 {vr(vO2)}, {vr(vO2)}, v17, vcc")
e("s_mov_b32 vcc_lo, 0")
e(f"v_cndmask_b32 {vr(vO4b)}, {vr(vO4)}, v17, vcc")
e(f"v_add_u32 {vr(vW2)}, 0x10000, {vr(vL16)}")
e(f"v_add_u32 {vr(vW2+1)}, 0x20000, {vr(vL16)}")
sWO, sLa, sGa0, sGa1, sL6, sG6 = T[3], T[4], T[5], T[8], T[13], T[14]
e(f"s_mul_i32 {sr(sWO)}, {sr(sNJ)}, {7*20480}")
e(f"s_lshr_b32 {sr(T[0])}, {sr(sW)}, 1")
e(f"s_mul_i32 {sr(T[0])}, {sr(T[0])}, 20480")
e(f"s_add_u32 {sr(sWO)}, {sr(sWO)}, {sr(T[0])}")
e(f"s_and_b32 {sr(T[1])}, {sr(sW)}, 1")
e(f"s_mul_i32 {sr(sLa)}, {sr(T[1])}, 5120")
e(f"s_add_u32 {sr(sLa)}, {sr(sLa)}, {sr(T[0])}")
e(f"s_cmp_eq_u32 {sr(T[1])}, 0")
e(f"s_cselect_b32 {sr(sGa0)}, {sr(RO[0])}, {sr(RO[1])}")
e(f"s_cselect_b32 {sr(sGa1)}, {sr(RO[2])}, {sr(RO[3])}")
e(f"s_cmp_lt_u32 {sr(sW)}, 2")
e(f"s_cselect_b32 {sr(sG6)}, {sr(sGa0)}, {sr(sGa1)}")
e(f"s_add_u32 {sr(sGa0)}, {sr(sGa0)}, {sr(sWO)}")
e(f"s_add_u32 {sr(sGa1)}, {sr(sGa1)}, {sr(sWO)}")
e(f"s_sub_u32 {sr(sWO)}, {sr(sWO)}, {sr(T[0])}")
e(f"s_add_u32 {sr(sG6)}, {sr(sG6)}, {sr(sWO)}")
e(f"s_mul_i32 {sr(sL6)}, {sr(sW)}, 5120")
e("s_waitcnt vmcnt(0)")
e("s_barrier")
stamp(6)
e(f"s_cmp_lg_u32 {sr(sW)}, 0")
e("s_cbranch_scc1 L_nopollX")
flag_store(sFO, 16, 17)
poll(22, 17)
lab("L_nopollX")
e("s_barrier")
stamp(7)
for b in range(2):
    for u in range(4):
        e(f"s_add_u32 {sr(T[0])}, {sr(sXO)}, {sr(RO[u])}")
        if b: e(f"s_add_u32 {sr(T[0])}, {sr(T[0])}, 20480")
        for i in range(4):
            e(f"buffer_load_dwordx4 {ar((b*20+u*5+i)*4,4)}, {vr(vL16)}, {sr(R_XRF,4)}, {sr(T[0])} offen offset:{i*1024} sc1")
        e(f"buffer_load_dwordx4 {ar((b*20+u*5+4)*4,4)}, {vr(vL16b)}, {sr(R_XRF,4)}, {sr(T[0])} offen sc1")
e(f"s_cmp_lg_u32 {sr(sW)}, 0")
e("s_cbranch_scc1 L_nopollW")
poll(23, 17)
e(f"s_cmp_lg_u32 {sr(sWG)}, 0")
e("s_cbranch_scc1 L_nopollW")
e(f"s_mov_b32 {sr(T[0])}, {NONCE:#x}")
flag_store(T[0], 16, 17)
lab("L_nopollW")
e("s_barrier")
stamp(8)
stamp(1, "D")
def wdma(st):
    g = []
    if st < 6:
        lo = (st >> 1) * 40960 + (st & 1) * 10240
        pre = [f"s_add_u32 m0, {sr(sLa)}, {lo}", f"s_add_u32 {sr(T[0])}, {sr([sGa0, sGa1][st & 1])}, {(st >> 1) * 40960}"]
    else:
        pre = [f"s_add_u32 m0, {sr(sL6)}, {6*20480}", f"s_add_u32 {sr(T[0])}, {sr(sG6)}, {6*20480}"]
    for i in range(4):
        g.append(pre + [f"buffer_load_dwordx4 {vr(vL16)}, {sr(R_WV2,4)}, {sr(T[0])} offen offset:{i*1024} sc1 lds"]); pre = []
    g.append(["s_add_u32 m0, m0, 4096", "s_nop 0", f"buffer_load_dwordx4 {vr(vL16b)}, {sr(R_WV2,4)}, {sr(T[0])} offen sc1 lds"])
    return g
dorder = []
dq = []
for st in range(7):
    for g in wdma(st):
        if st < args.dpre:
            for x in g: e(x)
            dorder.append(("W", st))
        else:
            dq.append((st, g))
def wread(dst, off):
    base = [vL16, vW2, vW2+1][off >> 16]
    return f"ds_read_b128 {vr(dst,4)}, {vr(base)} offset:{off & 0xffff}"
DACC = 32
WB = 64
NB = 8
PK = 128
OF = args.outflag
steps = []
for st in range(6):
    G = st >> 1
    for kk in range(10):
        ks = (st & 1) * 10 + kk
        steps.append((st, [(2*G)*20480 + ks*1024, (2*G+1)*20480 + ks*1024], G, ks))
for kk in range(10):
    steps.append((6, [6*20480 + (2*kk)*1024, 6*20480 + (2*kk+1)*1024], 3, kk))
nst = len(steps)
AHEAD = NB // 2 - 1
stores_issued = 0
def epilogue(G):
    ab = DACC + (G & 1) * 16
    out = []
    if G < 3:
        vo = [vO4, vO4b, vO4c][G]
        for b in range(2):
            p = PK + b*4
            a0 = ab + b*4; a1 = ab + 8 + b*4
            out += [f"v_cvt_pk_bf16_f32 {vr(p)}, {vr(a0)}, {vr(a0+1)}", f"v_cvt_pk_bf16_f32 {vr(p+1)}, {vr(a0+2)}, {vr(a0+3)}",
                    f"v_cvt_pk_bf16_f32 {vr(p+2)}, {vr(a1)}, {vr(a1+1)}", f"v_cvt_pk_bf16_f32 {vr(p+3)}, {vr(a1+2)}, {vr(a1+3)}",
                    f"buffer_store_dwordx4 {vr(p,4)}, {vr(vo)}, {sr(R_OUT,4)}, {sr(T[6+b])} offen offset:{G*64} {OF}"]
    else:
        for b in range(2):
            p = PK + 8 + b*2
            a0 = ab + b*4; a1 = ab + 8 + b*4
            out += [f"v_pk_add_f32 {vr(a0,2)}, {vr(a0,2)}, {vr(a1,2)}", f"v_pk_add_f32 {vr(a0+2,2)}, {vr(a0+2,2)}, {vr(a1+2,2)}",
                    f"v_cvt_pk_bf16_f32 {vr(p)}, {vr(a0)}, {vr(a0+1)}", f"v_cvt_pk_bf16_f32 {vr(p+1)}, {vr(a0+2)}, {vr(a0+3)}",
                    f"buffer_store_dwordx2 {vr(p,2)}, {vr(vO2)}, {sr(R_OUT,4)}, {sr(T[6+b])} offen offset:192 {OF}"]
    return out
issued = 0
synced = -1
pending_epi = []
def issue_reads(upto):
    global issued, synced
    while issued <= upto and issued < nst:
        st = steps[issued][0]
        if st > synced:
            assert sum(1 for x in dorder if x == ("W", st)) == 5, st
            e(f"s_waitcnt vmcnt({len(dorder) - 1 - max(i for i, x in enumerate(dorder) if x == ('W', st))})")
            e("s_barrier")
            if st == 0: stamp(9)
            stamp(2 + st, "D")
            synced = st
        for j in range(2):
            e(wread(WB + ((issued*2+j) % NB)*4, steps[issued][1][j]))
        issued += 1
for n in range(nst):
    st, offs, G, ks = steps[n]
    issue_reads(n + AHEAD)
    out_reads = (issued - n - 1) * 2
    ab = DACC + (G & 1) * 16
    first = (ks == 0)
    for j in range(2):
        e(f"s_waitcnt lgkmcnt({out_reads + 1 - j})")
        wf = vr(WB + ((n*2+j) % NB)*4, 4)
        for b in range(2):
            kx = ks if G < 3 else 2*ks + j
            d = vr(ab + j*8 + b*4, 4)
            mfma(d, wf, ar((b*20 + kx)*4, 4), "0" if first else d)
            if dq and j == 0 and b == 0 and (n % args.dgap == 0):
                st_, g_ = dq.pop(0)
                for x in g_: e(x)
                dorder.append(("W", st_))
            elif pending_epi and ks >= 3:
                x = pending_epi.pop(0); e(x)
                if x.startswith("buffer_store"): dorder.append(("S",))
    last = (n + 1 == nst) or steps[n+1][2] != G
    if last:
        assert not pending_epi
        pending_epi = epilogue(G)
stamp(9, "D")
nop(8)
for x in pending_epi: e(x)
stamp(10)
stamp(10, "D")
if args.stamps:
    e("s_waitcnt vmcnt(0)")
    e(f"{'s_memtime' if args.cyc else 's_memrealtime'} s[10:11]")
    e("s_waitcnt lgkmcnt(0)")
    e(f"s_cmp_lg_u32 {sr(sW)}, 0")
    e("s_cbranch_scc1 L_end")
    srd(R_A, P_WS, 0x100000, STAMP_OFF)
    e(f"s_lshl_b32 {sr(T[0])}, {sr(sWG)}, 8")
    e(f"v_mov_b32 v16, {sr(T[0])}")
    e("s_mov_b64 exec, 1")
    for k in range(11):
        e(f"v_mov_b32 v18, {sr(ST0+2*k)}")
        e(f"v_mov_b32 v19, {sr(ST0+2*k+1)}")
        e(f"buffer_store_dwordx2 v[18:19], v16, {sr(R_A,4)}, 0 offen offset:{8*k}")
        e("s_nop 1")
    e("v_mov_b32 v18, s10")
    e("v_mov_b32 v19, s11")
    e(f"buffer_store_dwordx2 v[18:19], v16, {sr(R_A,4)}, 0 offen offset:88")
    e(f"s_cmp_lg_u32 {sr(sWG)}, {args.dbgwg}")
    e("s_cbranch_scc1 L_end")
    srd(R_B, P_DBG, 256)
    e("v_mov_b32 v16, 0")
    for k in range(1, 11):
        e(f"s_sub_u32 {sr(T[0])}, {sr(ST0+2*k)}, {sr(ST0)}")
        e(f"v_mov_b32 v18, {sr(T[0])}")
        e(f"buffer_store_dword v18, v16, {sr(R_B,4)}, 0 offen offset:{4*k}")
    e(f"s_sub_u32 {sr(T[0])}, s10, {sr(ST0)}")
    e(f"v_mov_b32 v18, {sr(T[0])}")
    e(f"buffer_store_dword v18, v16, {sr(R_B,4)}, 0 offen offset:44")
lab("L_end")
e("s_endpgm")
L.append('.section .rodata,"a"')
L.append(".p2align 6")
L.append(f".amdhsa_kernel {NAME}")
for x in ["next_free_vgpr 512", "next_free_sgpr 102", "accum_offset 256", "group_segment_fixed_size 0", "kernarg_size 72",
          "user_sgpr_count 2", "user_sgpr_kernarg_segment_ptr 1", "system_sgpr_workgroup_id_x 1"]:
    L.append("  .amdhsa_" + x)
L.append(".end_amdhsa_kernel")

import subprocess, re, tempfile, os
def finalize(L):
    flat = []
    for x in L: flat += x.split("\n")
    if args.noscout:
        return [x for x in flat if x != "@SCOUT@"]
    base = [x for x in flat if x != "@SCOUT@" and not x.startswith(".p2align 6")]
    base = [x for x in base]
    tmp = tempfile.mkdtemp()
    i0 = base.index('.section .rodata,"a"')
    open(tmp + "/a.s", "w").write("\n".join(base[:i0]) + "\n")
    subprocess.run(["clang", "-x", "assembler", "-target", "amdgcn-amd-amdhsa", "-mcpu=gfx950", "-c", tmp + "/a.s", "-o", tmp + "/a.o"], check=True)
    dis = subprocess.run(["llvm-objdump", "-d", "--mcpu=gfx950", tmp + "/a.o"], capture_output=True, text=True).stdout
    sizes = [4 * len(m.group(1).split()) for m in re.finditer(r"// [0-9A-F]{12}: ((?:[0-9A-F]{8} ?)+)", dis)]
    out = []; k = 0; since = 0; n = 0; started = False
    def isins(x): return x.startswith("  ") and not x.startswith("  ;") and not x.startswith("  .")
    nins = sum(1 for x in flat[:flat.index('.section .rodata,"a"')] if isins(x))
    assert nins == len(sizes), (nins, len(sizes))
    masked = False
    for x in flat:
        if x == "@SCOUT@":
            out.append(x); started = True; since = args.sgap - 300; continue
        if x == '.section .rodata,"a"': started = False
        if isins(x) and k < len(sizes):
            if started and since >= args.sgap and not x.strip().startswith("s_endpgm"):
                out.append(f"L_stub{n}:"); out.append("  s_cbranch_execz L_scret"); n += 1; since = 0
            since += sizes[k]; k += 1
        out.append(x)
    sc = [f"  s_cmp_lg_u32 {sr(sW)}, 3", "  s_cbranch_scc1 L_scdone", "  s_mov_b32 s0, 1", "  s_mov_b64 exec, 0"]
    for i in range(n):
        sc += [f"  s_cmp_eq_u32 {sr(sJ)}, {i}", f"  s_cbranch_scc1 L_stub{i}"]
    sc += ["L_scret:", "  s_cmp_eq_u32 s0, 1", "  s_cbranch_scc0 L_end", "  s_mov_b32 s0, 0", "  s_mov_b64 exec, -1", "L_scdone:"]
    assert n <= 27, n
    i = out.index("@SCOUT@")
    print(f"; {n} stubs", file=sys.stderr)
    return out[:i] + sc + out[i+1:]
open(args.o, "w").write("\n".join(finalize(L)) + "\n")
```
